```python
import torch

def _softmax(x, axis=-1):
    return torch.softmax(x, dim=axis)
def _gelu(x):
    return torch.nn.functional.gelu(x, approximate="tanh")
def _silu(x):
    return torch.nn.functional.silu(x)
def _sigmoid(x):
    return torch.sigmoid(x)
def _layernorm(x, axis=-1, eps=1e-5):
    m = x.mean(dim=axis, keepdim=True)
    v = x.var(dim=axis, keepdim=True, unbiased=False)
    return (x - m) / torch.sqrt(v + eps)
def _scatter_add(tgt, idx, src, axis=0):
    return tgt.clone().index_add_(axis, idx, src)
def _segment_sum(src, seg, n):
    out = torch.zeros((n,) + src.shape[1:], dtype=src.dtype)
    return out.index_add_(0, seg, src)
def _pad(x, pw):
    flat = tuple(v for pair in reversed(pw) for v in pair)
    return torch.nn.functional.pad(x, flat)

kernel_name = 'parallel_sum__mha_block_cached__glu_gated_reglu__decode'

def setup_inputs():

    _w = (lambda a: (lambda t: t.to(torch.bfloat16) if t.is_floating_point() else t)(torch.as_tensor(a)))
    def _A_setup():
        B, Sq, D = 1, 1, 576
        H, Sk, Dh = 32, 8192, 128
        return {
            "x": _w((lambda *s: torch.randn(*s, dtype=torch.bfloat16) * 0.05)(B, Sq, D)),
            "k_cache": _w((lambda *s: torch.randn(*s, dtype=torch.bfloat16) * 1.6)(B, H, Sk, Dh)),
            "v_cache": _w((lambda *s: torch.randn(*s, dtype=torch.bfloat16) * 0.8)(B, H, Sk, Dh)),
            "wq": _w((lambda *s: torch.randn(*s, dtype=torch.bfloat16) * 1.6)(D, H * Dh) * (D ** -0.5)),
            "wo": _w((lambda *s: torch.randn(*s, dtype=torch.bfloat16) * 0.8)(H * Dh, D) * ((H * Dh) ** -0.5)),
        }
    _A_in = _A_setup()

    def _B_setup():
        B, S, D, F = 1, 1, 576, 4608
        return {
            "x": _w((lambda *s: torch.randn(*s, dtype=torch.bfloat16) * 0.05)(B, S, D)),
            "W_gate": _w((lambda *s: torch.randn(*s, dtype=torch.bfloat16) * 0.4)(D, F) * (2.0 / D) ** 0.5),
            "W_up": _w((lambda *s: torch.randn(*s, dtype=torch.bfloat16) * 0.4)(D, F) * (2.0 / D) ** 0.5),
            "W_down": _w((lambda *s: torch.randn(*s, dtype=torch.bfloat16) * 0.4)(F, D) * (1.0 / F) ** 0.5),
        }
    _B_in = _B_setup()

    return {
        "A_x": _A_in["x"],
        "A_k_cache": _A_in["k_cache"],
        "A_v_cache": _A_in["v_cache"],
        "A_wq": _A_in["wq"],
        "A_wo": _A_in["wo"],
        "B_x": _B_in["x"],
        "B_W_gate": _B_in["W_gate"],
        "B_W_up": _B_in["W_up"],
        "B_W_down": _B_in["W_down"],
    }

def reference(A_x, A_k_cache, A_v_cache, A_wq, A_wo, B_x, B_W_gate, B_W_up, B_W_down):
    def _A_ref(x, k_cache, v_cache, wq, wo):
        B, Sq, D = x.shape
        H, Dh = 32, 128
        q = (lambda x, *d: x.permute(*d))((x @ wq).reshape(B, Sq, H, Dh), 0, 2, 1, 3)
        scores = torch.einsum("bhqd,bhkd->bhqk", q, k_cache) * (Dh ** -0.5)
        p = _softmax(scores, axis=-1)
        o = torch.einsum("bhqk,bhkd->bhqd", p, v_cache)
        return (lambda x, *d: x.permute(*d))(o, 0, 2, 1, 3).reshape(B, Sq, H * Dh) @ wo

    def _B_ref(x, W_gate, W_up, W_down):
        gate = torch.einsum("bsd,df->bsf", x, W_gate)
        up = torch.einsum("bsd,df->bsf", x, W_up)
        gate = gate * (lambda x, dt: x.to(dt))(gate > 0, gate.dtype)
        h = gate * up
        return torch.einsum("bsf,fd->bsd", h, W_down)

    x = A_x
    xn = _layernorm(x, axis=-1)
    return x + _A_ref(xn, A_k_cache, A_v_cache, A_wq, A_wo) + _B_ref(xn, B_W_gate, B_W_up, B_W_down)
```

```python
import re

REG = re.compile(r'^(-?\|?)([vas])(\d+)\|?$')
RNG = re.compile(r'^(-?)([vas])\[(\d+):(\d+)\]$')

def regs(tok):
    tok = tok.strip()
    if tok in ('vcc', 'vcc_lo', 'vcc_hi'): return {('s', 'vcc')}
    if tok in ('exec', 'exec_lo', 'exec_hi'): return {('s', 'exec')}
    if tok == 'm0': return {('s', 'm0')}
    m = REG.match(tok)
    if m: return {(m.group(2), int(m.group(3)))}
    m = RNG.match(tok)
    if m: return {(m.group(2), k) for k in range(int(m.group(3)), int(m.group(4)) + 1)}
    return set()

TRANS = ('v_exp_f32', 'v_log_f32', 'v_rcp_f32', 'v_rsq_f32', 'v_sqrt_f32', 'v_sin_f32', 'v_cos_f32')

class Ins:
    def __init__(self, text):
        self.text = text
        t = text.split(';')[0].strip()
        self.region = None
        self.label = t.endswith(':')
        self.directive = t.startswith('.') or t == ''
        self.op = ''
        self.w = set(); self.r = set(); self.kind = 'other'; self.states = 1
        self.A = self.B = self.C = self.D = set(); self.data = set()
        if self.label or self.directive:
            self.states = 0; self.kind = 'label' if self.label else 'dir'; return
        parts = t.split(None, 1)
        op = self.op = parts[0]
        rest = parts[1] if len(parts) > 1 else ''
        ops = []
        for o in re.split(r',\s*(?![^\[]*\])', rest):
            ops.append(o.strip().split(' ')[0] if o.strip() else '')
        self.dpp = ('_dpp' in op)
        if op == 's_nop':
            self.states = int(ops[0]) + 1; self.kind = 'nop'
        elif op.startswith('v_mfma'):
            self.kind = 'mfma'
            self.D, self.A, self.B, self.C = (regs(x) for x in ops[:4])
            self.w = set(self.D); self.r = self.A | self.B | self.C
        elif op.startswith('v_'):
            self.kind = 'valu'
            if op.startswith('v_cmp'):
                self.w = regs(ops[0]); self.r = set().union(*[regs(x) for x in ops[1:]])
            elif op.startswith('v_permlane'):
                self.w = regs(ops[0]) | regs(ops[1]); self.r = set(self.w)
            elif op.startswith('v_add_co') or op.startswith('v_addc_co') or op.startswith('v_sub_co'):
                self.w = regs(ops[0]) | regs(ops[1]); self.r = set().union(*[regs(x) for x in ops[2:]])
            else:
                self.w = regs(ops[0]); self.r = set().union(set(), *[regs(x) for x in ops[1:]])
                if self.dpp or op.startswith(('v_fmac', 'v_dot2c', 'v_writelane')): self.r |= self.w
        elif op == 'buffer_wbl2':
            self.kind = 'salu'
        elif op.startswith(('buffer_', 'global_')):
            self.kind = 'vmem'
            allr = [regs(x) for x in ops]
            if 'load' in op:
                self.w = allr[0]; self.r = set().union(*allr[1:])
            else:
                self.r = set().union(*allr)
                if op.startswith('buffer_'): self.data = allr[0]
                else: self.data = allr[1]
                self.wide = op.endswith(('x3', 'x4'))
        elif op.startswith('s_'):
            self.kind = 'salu'
            if op.startswith(('s_cmp', 's_cbranch', 's_branch', 's_waitcnt', 's_barrier', 's_endpgm', 's_bitcmp', 's_sleep', 's_setprio')):
                self.r = set().union(set(), *[regs(x) for x in ops])
            else:
                self.w = regs(ops[0]); self.r = set().union(set(), *[regs(x) for x in ops[1:]])
        elif op.startswith('ds_'):
            self.kind = 'ds'
            allr = [regs(x) for x in ops]
            if 'read' in op or 'bpermute' in op:
                self.w = allr[0]; self.r = set().union(*allr[1:])
            else:
                self.r = set().union(*allr)
        else:
            raise ValueError('unknown instruction ' + text)

def need(p, c):
    n = 0
    if p.kind == 'valu':
        vw = {x for x in p.w if x[0] in 'va'}
        sw = {x for x in p.w if x[0] == 's'}
        if c.kind == 'mfma' and vw & c.r: n = max(n, 2)
        if c.kind == 'valu':
            if c.dpp and vw & c.r: n = max(n, 2)
            if c.op.startswith('v_permlane') and vw & c.r: n = max(n, 2)
            if c.op.startswith(('v_readlane', 'v_readfirstlane')) and vw & c.r: n = max(n, 1)
            if sw & c.r: n = max(n, 4 if c.op.startswith(('v_readlane', 'v_writelane')) else 2)
            if p.op.split('_e')[0] in TRANS and vw & c.r and c.op.split('_e')[0] not in TRANS: n = max(n, 1)
        if c.kind == 'vmem' and sw & c.r: n = max(n, 5)
    if p.kind == 'mfma':
        if c.kind == 'mfma':
            if p.D & (c.A | c.B): n = max(n, 8)
            if p.D & c.C and p.D != c.C: n = max(n, 6)
        elif c.kind == 'valu':
            if p.D & (c.r | c.w): n = max(n, 8)
            if p.C & c.w: n = max(n, 3)
        elif c.kind in ('vmem', 'ds'):
            if p.D & (c.r | c.w): n = max(n, 8)
    if p.kind == 'vmem' and p.data and getattr(p, 'wide', False):
        if c.kind == 'valu' and p.data & c.w: n = max(n, 2)
        if c.kind in ('vmem', 'ds', 'mfma') and p.data & c.w: n = max(n, 1)
    return n

class Prog:
    def __init__(self):
        self.L = []
        self.nvm = 0
        self.done = -1
        self.region = None
    def I(self, text):
        for line in text.strip().split('\n'):
            line = line.strip()
            if line:
                x = Ins(line); x.region = self.region; self.L.append(x)
    def vm(self, text, counted=True):
        self.I(text)
        if not counted: return None
        self.nvm += 1
        return self.nvm - 1
    def wait(self, idx):
        if idx is None or idx <= self.done: return
        n = self.nvm - 1 - idx
        assert 0 <= n <= 63, n
        self.I(f's_waitcnt vmcnt({n})')
        self.done = idx
    def waitall(self):
        self.I('s_waitcnt vmcnt(0)'); self.done = self.nvm - 1
    def pace(self, depth):
        self.wait(self.nvm - depth)
    def isdone(self, idx): return idx is not None and idx <= self.done
    def padded(self):
        out = []
        for c in self.L:
            if c.kind not in ('label', 'dir'):
                dist = 0; pad = 0
                for p in reversed(out):
                    if p.kind == 'label' and getattr(p, 'fence', False): break
                    if p.states:
                        pad = max(pad, need(p, c) - dist)
                        if p.region is None or p.region == c.region: dist += p.states
                    if dist >= 12: break
                if pad > 0:
                    x = Ins(f's_nop {pad-1}'); x.region = c.region; out.append(x)
            out.append(c)
        return out
    def text(self):
        return '\n'.join((x.text if x.kind in ('label', 'dir') else '  ' + x.text) for x in self.padded()) + '\n'
```

```python
import struct, sys
from asmlib import Prog
NAME = "parallel_sum__mha_block_cached__glu_gated_reglu__decode"
KN = NAME + "_kernel"

OOB = 0x40000000
WS_QGU, WS_O, WS_Y, WS_STAT, WS_STAMP = 0, 0x80000, 0x100000, 0x180000, 0x200000
YSLOT = 384
INV = -1
SPIN = 400000

def f32(x): return '0x%08x' % struct.unpack('<I', struct.pack('<f', x))[0]

def gen(D=10, D0=12, kfl="nt", tfl="nt", rfl="nt", wfl="nt", gap1=8, qk_rate=6, wd_at=20, st_at=34,
        stamps=False, pf=True, round_s=True, htail=0):
    P = Prog(); I = P.I
    nv = [1]
    def V(n=1, al=1):
        a = (nv[0] + al - 1) // al * al; nv[0] = a + n; return a
    vLane, vG, vI, vT0, vT1, vT2, vT3 = (V() for _ in range(7))
    vK, vV, vW, vD, vDy, vOff0, vOut, vYg, vOg, vXoff = (V() for _ in range(10))
    vMx, vL, vF, vXo, vPf, vOg2 = (V() for _ in range(6))
    vTA = V(2, 2); vST = V(2, 2); vP2 = V(2, 2); vP3 = V(2, 2)
    M = V(4, 4); S = V(16, 4); Bq = V(16, 4)
    QK = [V(4, 4), V(4, 4)]; PV = V(4, 4); Y = V(4, 4); TACC = V(4, 4)
    AA = [V(4, 4), V(4, 4)]
    CLR = V(4, 4)
    X = V(18, 2); F = V(20, 4); RAW = V(12, 4)
    TB = V(72, 4)
    G = F
    H = X
    assert nv[0] <= 256, nv[0]
    def vr(a, n): return f"v[{a}:{a+n-1}]"
    def ar(a, n): return f"a[{a}:{a+n-1}]"
    sX, sKp, sVp, sWq, sWo, sWg, sWu, sWd, sOut, sDbg, sWs = 4, 6, 8, 10, 12, 16, 18, 20, 22, 24, 26
    rK, rV, rX, rWO, rWD, rWS, rOUT, rDBG = 28, 32, 36, 40, 44, 48, 52, 56
    sPC = 60; sR, sS, sW, sU = 62, 63, 64, 65
    sA, sB, sStr = 66, 68, 70
    sT0, sT1, sT2, sT3, sSo, sCnt = 72, 73, 74, 75, 76, 77
    sQGU, sOown, sOh, sYown, sYs, sStOwn, sStH, sC = 78, 79, 80, 81, 82, 83, 84, 85
    sEx = 86
    sStamp = 88
    def sr(a, n=2): return f"s[{a}:{a+n-1}]"
    nst = [0]
    def stamp():
        if not stamps: return
        I(f"s_memrealtime s[100:101]"); I("s_waitcnt lgkmcnt(0)"); I(f"s_mov_b32 s{sStamp+nst[0]}, s100"); nst[0] += 1
        assert nst[0] <= 12
    retry = []
    DPPF = "row_mask:0xf bank_mask:0xf"
    def rne(dst, src):
        I(f"v_cvt_pk_bf16_f32 v{dst}, v{src}, v{src}"); I(f"v_and_b32 v{dst}, 0xffff0000, v{dst}")
    def rowred(op, v, steps):
        for s_ in steps: I(f"{op}_dpp v{v}, v{v}, v{v} row_ror:{s_} {DPPF}")
    def cross(op, v, t, which=(16, 32)):
        for x in which:
            I(f"v_mov_b32 v{t}, v{v}"); I(f"v_permlane{x}_swap_b32 v{t}, v{v}"); I(f"{op} v{v}, v{t}, v{v}")
    def build_a(a, src, lane):
        for w in range(4): I(f"v_and_b32_dpp v{a+w}, v{src}, v{M+w} row_newbcast:{lane} {DPPF}")
    def mfma(d, a, b, c): I(f"v_mfma_f32_16x16x32_bf16 {d}, {a}, {b}, {c}")
    def scatter_reduce(g):
        I(f"v_permlane32_swap_b32 v{g}, v{g+2}"); I(f"v_permlane32_swap_b32 v{g+1}, v{g+3}")
        I(f"v_add_f32 v{g}, v{g}, v{g+2}"); I(f"v_add_f32 v{g+1}, v{g+1}, v{g+3}")
        I(f"v_permlane16_swap_b32 v{g}, v{g+1}"); I(f"v_add_f32 v{g}, v{g}, v{g+1}")

    I("s_cmp_ge_u32 s2, 256"); I("s_cbranch_scc1 L_end")
    I("s_load_dwordx16 s[4:19], s[0:1], 0"); I("s_load_dwordx8 s[20:27], s[0:1], 64")
    I(f"s_getpc_b64 {sr(sPC)}"); I("L_pc:")
    stamp_first = stamps
    if stamps: I("s_memrealtime s[100:101]")
    I(f"v_lshrrev_b32 v{vT0}, 6, v0"); I(f"v_and_b32 v{vLane}, 63, v0")
    I(f"s_lshr_b32 s{sU}, s2, 3")
    I(f"v_readfirstlane_b32 s{sW}, v{vT0}")
    if pf:
        I(f"v_lshl_add_u32 v{vT1}, s{sU}, 2, v{vT0}")
        I(f"v_lshlrev_b32 v{vT1}, 7, v{vT1}")
        I(f"v_lshl_add_u32 v{vT1}, v{vLane}, 6, v{vT1}")
        I(f"v_min_u32 v{vT1}, L_end-L_pc, v{vT1}")
        I("s_mov_b64 exec, 3")
        P.vm(f"global_load_dword v{vPf}, v{vT1}, {sr(sPC)}")
        I("s_mov_b64 exec, -1")
    I(f"s_and_b32 s{sR}, s2, 7"); I(f"s_lshl_b32 s{sR}, s{sR}, 2"); I(f"s_lshr_b32 s{sT0}, s2, 6"); I(f"s_add_u32 s{sR}, s{sR}, s{sT0}")
    I(f"s_and_b32 s{sS}, s{sU}, 7")
    I(f"v_lshrrev_b32 v{vG}, 4, v{vLane}"); I(f"v_and_b32 v{vI}, 15, v{vLane}")
    I(f"v_add_u32 v{vT0}, s{sS}, v{vI}"); I(f"v_and_b32 v{vT0}, 7, v{vT0}"); I(f"v_mul_u32_u24 v{vT0}, 144, v{vT0}")
    I(f"v_mad_u32_u24 v{vXoff}, v{vG}, 36, v{vT0}")
    I(f"s_cmp_eq_u32 s{sW}, 0"); I(f"s_movk_i32 s{sStr}, 0x2400"); I(f"s_cselect_b32 s{sStr}, 0x2000, s{sStr}"); I(f"s_mov_b32 s{sStr+1}, 0")
    I(f"s_cmp_eq_u32 s{sW}, 3")
    I(f"s_cselect_b32 s{sT1}, 1, 15")
    I(f"s_lshl_b32 s{sT2}, s{sR}, 8"); I(f"s_lshl_b32 s{sT3}, s{sR}, 5"); I(f"s_addk_i32 s{sT3}, 0x2000")
    I(f"s_cmp_eq_u32 s{sW}, 3"); I(f"s_cselect_b32 s{sT2}, s{sT3}, s{sT2}")
    I(f"s_mul_i32 s{sT0}, s{sS}, 72")
    I(f"v_mad_u32_u24 v{vT0}, v{vG}, 18, s{sT0}"); I(f"v_mul_u32_u24 v{vT0}, s{sStr}, v{vT0}")
    I(f"v_and_b32 v{vT1}, s{sT1}, v{vI}"); I(f"v_lshl_add_u32 v{vT0}, v{vT1}, 4, v{vT0}"); I(f"v_add_u32 v{vP2}, s{sT2}, v{vT0}")
    I(f"v_mov_b32 v{vP2+1}, 0")
    I(f"v_and_b32 v{vT1}, 2, v{vI}"); I(f"v_cmp_ne_u32 vcc, 0, v{vT1}")
    I(f"s_mov_b32 s{rX+2}, 1152"); I(f"s_mov_b32 s{rX+3}, 0x20000")
    I("s_waitcnt lgkmcnt(0)")
    I(f"s_mov_b32 s{rX}, s{sX}"); I(f"s_mov_b32 s{rX+1}, s{sX+1}")
    xl = [P.vm(f"buffer_load_dwordx4 {vr(RAW,4)}, v{vXoff}, {sr(rX,4)}, 0 offen"),
          P.vm(f"buffer_load_dwordx4 {vr(RAW+4,4)}, v{vXoff}, {sr(rX,4)}, 0 offen offset:16"),
          P.vm(f"buffer_load_dword v{RAW+8}, v{vXoff}, {sr(rX,4)}, 0 offen offset:32")]
    I(f"s_cmp_eq_u32 s{sW}, 0"); I(f"s_cselect_b64 {sr(sA)}, {sr(sWq)}, {sr(sWg)}")
    I(f"s_cmp_eq_u32 s{sW}, 2"); I(f"s_cselect_b64 {sr(sA)}, {sr(sWu)}, {sr(sA)}")
    I(f"s_cmp_eq_u32 s{sW}, 3"); I(f"s_cselect_b64 {sr(sB)}, {sr(sWu)}, {sr(sA)}")
    I(f"v_mov_b32 v{vT0}, s{sA}"); I(f"v_mov_b32 v{vT1}, s{sA+1}"); I(f"v_mov_b32 v{vT2}, s{sB}"); I(f"v_mov_b32 v{vT3}, s{sB+1}")
    I(f"v_cndmask_b32 v{vTA}, v{vT0}, v{vT2}, vcc"); I(f"v_cndmask_b32 v{vTA+1}, v{vT1}, v{vT3}, vcc")
    I(f"v_lshl_add_u64 {vr(vTA,2)}, {vr(vTA,2)}, 0, {vr(vP2,2)}")
    tl = []
    def tile_load():
        t = len(tl)
        tl.append(P.vm(f"global_load_dwordx4 {vr(TB+4*t,4)}, {vr(vTA,2)}, off {tfl}"))
        if t < 17: I(f"v_lshl_add_u64 {vr(vTA,2)}, {vr(vTA,2)}, 0, {sr(sStr)}")
    while P.nvm < D0: tile_load()

    I(f"s_lshl_b32 s{sT0}, s{sR}, 21"); I(f"s_lshl_b32 s{sT1}, s{sS}, 18"); I(f"s_add_u32 s{sT0}, s{sT0}, s{sT1}")
    I(f"s_lshl_b32 s{sT1}, s{sW}, 12"); I(f"s_add_u32 s{sT0}, s{sT0}, s{sT1}")
    for r_, p_ in ((rK, sKp), (rV, sVp)):
        I(f"s_add_u32 s{r_}, s{p_}, s{sT0}"); I(f"s_addc_u32 s{r_+1}, s{p_+1}, 0")
        I(f"s_mov_b32 s{r_+2}, {(256<<10) - 3*4096}"); I(f"s_mov_b32 s{r_+3}, 0x20000")
    I(f"s_mul_i32 s{sT0}, s{sS}, 144")
    for r_, p_, n_ in ((rWO, sWo, 4096*1152), (rWD, sWd, 4608*1152)):
        I(f"s_add_u32 s{r_}, s{p_}, s{sT0}"); I(f"s_addc_u32 s{r_+1}, s{p_+1}, 0")
        I(f"s_sub_u32 s{r_+2}, {n_}, s{sT0}"); I(f"s_mov_b32 s{r_+3}, 0x20000")
    for r_, p_, n_ in ((rWS, sWs, 0x1000000), (rOUT, sOut, 1152), (rDBG, sDbg, 256)):
        I(f"s_mov_b32 s{r_}, s{p_}"); I(f"s_mov_b32 s{r_+1}, s{p_+1}"); I(f"s_mov_b32 s{r_+2}, {n_}"); I(f"s_mov_b32 s{r_+3}, 0x20000")
    I(f"s_lshl_b32 s{sT0}, s{sR}, 3"); I(f"s_add_u32 s{sT0}, s{sT0}, s{sS}"); I(f"s_lshl_b32 s{sT0}, s{sT0}, 2"); I(f"s_add_u32 s{sT0}, s{sT0}, s{sW}")
    I(f"s_lshl_b32 s{sQGU}, s{sT0}, 9")
    I(f"s_add_u32 s{sOown}, s{sQGU}, {WS_O}")
    I(f"s_lshl_b32 s{sStOwn}, s{sT0}, 3"); I(f"s_add_u32 s{sStOwn}, s{sStOwn}, {WS_STAT}")
    I(f"s_lshl_b32 s{sStH}, s{sR}, 8"); I(f"s_add_u32 s{sStH}, s{sStH}, {WS_STAT}")
    I(f"s_lshl_b32 s{sOh}, s{sR}, 14"); I(f"s_lshl_b32 s{sT1}, s{sW}, 7"); I(f"s_add_u32 s{sOh}, s{sOh}, s{sT1}")
    I(f"s_mul_i32 s{sYs}, s{sS}, {128*YSLOT}"); I(f"s_add_u32 s{sYs}, s{sYs}, {WS_Y}")
    I(f"s_lshl_b32 s{sT1}, s{sR}, 2"); I(f"s_add_u32 s{sT1}, s{sT1}, s{sW}"); I(f"s_mul_i32 s{sT1}, s{sT1}, {YSLOT}"); I(f"s_add_u32 s{sYown}, s{sYs}, s{sT1}")
    I(f"s_lshl_b32 s{sT1}, s{sR}, 4"); I(f"s_add_u32 s{sYs}, s{sYs}, s{sT1}")
    I(f"s_mul_i32 s{sC}, s{sS}, 144"); I(f"s_lshl_b32 s{sT1}, s{sR}, 3"); I(f"s_add_u32 s{sC}, s{sC}, s{sT1}")
    vOob = vT3
    I(f"v_mov_b32 v{vOob}, {OOB}")
    I(f"v_lshlrev_b32 v{vV}, 4, v{vLane}")
    I(f"v_and_b32 v{vT0}, 3, v{vI}"); I(f"v_lshrrev_b32 v{vT1}, 2, v{vI}")
    I(f"v_lshlrev_b32 v{vK}, 8, v{vT1}"); I(f"v_lshl_add_u32 v{vK}, v{vG}, 6, v{vK}"); I(f"v_lshl_add_u32 v{vK}, v{vT0}, 4, v{vK}")
    I(f"v_lshlrev_b32 v{vT0}, 4, v{vI}"); I(f"v_mad_u32_u24 v{vW}, v{vG}, s{rX+2}, v{vT0}")
    I(f"v_cmp_gt_u32 vcc, 9, v{vI}"); I(f"v_cndmask_b32 v{vW}, v{vOob}, v{vW}, vcc")
    I(f"v_lshlrev_b32 v{vT0}, 5, v{vI}"); I(f"v_lshl_add_u32 v{vD}, v{vG}, 4, v{vT0}")
    I(f"v_cmp_gt_u32 vcc, 32, v{vLane}"); I(f"v_cndmask_b32 v{vD}, v{vOob}, v{vD}, vcc")
    I(f"v_cmp_gt_u32 vcc, 9, v{vI}"); I(f"v_cndmask_b32 v{vDy}, v{vOob}, v{vD}, vcc")
    I(f"v_cmp_eq_u32 vcc, 0, v{vLane}"); I(f"v_cndmask_b32 v{vOff0}, v{vOob}, v{vLane}, vcc")
    I(f"v_lshlrev_b32 v{vT0}, 1, v{vG}"); I(f"v_cmp_eq_u32 vcc, 0, v{vI}"); I(f"v_cndmask_b32 v{vOut}, v{vOob}, v{vT0}, vcc")
    I(f"v_mul_u32_u24 v{vYg}, {YSLOT}, v{vLane}")
    I(f"v_lshrrev_b32 v{vT0}, 3, v{vLane}"); I(f"v_and_b32 v{vT1}, 7, v{vLane}"); I(f"v_lshlrev_b32 v{vT1}, 4, v{vT1}")
    I(f"v_lshl_add_u32 v{vOg}, v{vT0}, 9, v{vT1}"); I(f"v_add_u32 v{vOg2}, 0x1000, v{vOg}")
    I(f"v_and_b32 v{vT0}, 1, v{vI}"); I(f"v_lshlrev_b32 v{vT0}, 4, v{vT0}"); I(f"v_mov_b32 v{vT1}, 0xffff"); I(f"v_lshlrev_b32 v{vT0}, v{vT0}, v{vT1}")
    I(f"v_lshrrev_b32 v{vT1}, 1, v{vI}")
    for w in range(4):
        I(f"v_cmp_eq_u32 vcc, {w}, v{vT1}"); I(f"v_cndmask_b32 v{M+w}, 0, v{vT0}, vcc")
    for w in range(4): I(f"v_mov_b32 v{CLR+w}, {INV}")
    if stamps:
        I("s_waitcnt lgkmcnt(0)"); I(f"s_mov_b32 s{sStamp}, s100"); nst[0] = 1

    P.wait(xl[2])
    stamp()
    for d in range(9):
        I(f"v_lshlrev_b32 v{F+2*d}, 16, v{RAW+d}"); I(f"v_and_b32 v{F+2*d+1}, 0xffff0000, v{RAW+d}")
    I(f"v_pk_add_f32 {vr(vP3,2)}, {vr(F,2)}, {vr(F+2,2)}")
    for d in range(2, 9): I(f"v_pk_add_f32 {vr(vP3,2)}, {vr(vP3,2)}, {vr(F+2*d,2)}")
    I(f"v_add_f32 v{vT0}, v{vP3}, v{vP3+1}")
    while len(tl) < 18 and len(tl) < D0: P.pace(D0); tile_load()
    rowred("v_add_f32", vT0, (8, 4, 2, 1)); cross("v_add_f32", vT0, vT1)
    I(f"v_mul_f32 v{vP2}, {f32(1.0/1152)}, v{vT0}"); I(f"v_mov_b32 v{vP2+1}, v{vP2}")
    for d in range(9):
        I(f"v_pk_add_f32 {vr(X+2*d,2)}, {vr(F+2*d,2)}, {vr(vP2,2)} neg_lo:[0,1] neg_hi:[0,1]")
    I(f"v_pk_mul_f32 {vr(vP3,2)}, {vr(X,2)}, {vr(X,2)}")
    for d in range(1, 9): I(f"v_pk_fma_f32 {vr(vP3,2)}, {vr(X+2*d,2)}, {vr(X+2*d,2)}, {vr(vP3,2)}")
    I(f"v_add_f32 v{vT0}, v{vP3}, v{vP3+1}")
    while len(tl) < 18 and len(tl) < D0 + 2: P.pace(D0); tile_load()
    rowred("v_add_f32", vT0, (8, 4, 2, 1)); cross("v_add_f32", vT0, vT1)
    I(f"v_mul_f32 v{vT0}, {f32(1.0/1152)}, v{vT0}")
    rne(vT0, vT0); I(f"v_add_f32 v{vT0}, {f32(1e-5)}, v{vT0}"); rne(vT0, vT0)
    I(f"v_sqrt_f32 v{vT0}, v{vT0}"); rne(vT0, vT0); I(f"v_rcp_f32 v{vP3}, v{vT0}")
    rne(vP2, vP2); I(f"v_mov_b32 v{vP2+1}, v{vP2}"); I(f"v_mov_b32 v{vP3+1}, v{vP3}")
    for d in range(9):
        I(f"v_pk_add_f32 {vr(F+2*d,2)}, {vr(F+2*d,2)}, {vr(vP2,2)} neg_lo:[0,1] neg_hi:[0,1]")
    for d in range(9): I(f"v_cvt_pk_bf16_f32 v{RAW+d}, v{F+2*d}, v{F+2*d+1}")
    while len(tl) < 18 and len(tl) < D0 + 4: P.pace(D0); tile_load()
    for d in range(9):
        I(f"v_lshlrev_b32 v{F+2*d}, 16, v{RAW+d}"); I(f"v_and_b32 v{F+2*d+1}, 0xffff0000, v{RAW+d}")
    for d in range(9): I(f"v_pk_mul_f32 {vr(F+2*d,2)}, {vr(F+2*d,2)}, {vr(vP3,2)}")
    for t in range(18): I(f"v_cvt_pk_bf16_f32 v{X+t}, v{F+t}, v{F+t}")
    stamp()

    kl, vl, wdl, wol = [], [], [], []
    def vslot(n): return vr(TB + 4*n, 4) if n < 16 else ar(4*(n-16), 4)
    def kv_load(lst, srd, base, dst):
        n = len(lst); o = (n // 4) * 16384
        if n % 4 == 0: I(f"s_mov_b32 s{sSo}, {o}")
        lst.append(P.vm(f"buffer_load_dwordx4 {dst}, v{base}, {sr(srd,4)}, s{sSo} offen offset:{(n%4)*1024} {kfl}"))
    def k_load(): kv_load(kl, rK, vK, ar(4*len(kl), 4))
    def v_load(): kv_load(vl, rV, vV, vslot(len(vl)))
    def wslot(n): return ar(4*(48+n), 4)
    def wd_load():
        t = len(wdl)
        if t < 8: I(f"s_lshl_b32 s{sT0}, s{sR}, 7"); I(f"s_lshl_b32 s{sT1}, s{sW}, 5"); I(f"s_addk_i32 s{sT1}, {4*t}")
        else:     I(f"s_lshl_b32 s{sT0}, s{sR}, 4"); I(f"s_lshl_b32 s{sT1}, s{sW}, 2"); I(f"s_addk_i32 s{sT1}, 4096")
        I(f"s_add_u32 s{sT0}, s{sT0}, s{sT1}"); I(f"s_mul_i32 s{sT0}, s{sT0}, 1152")
        wdl.append(P.vm(f"buffer_load_dwordx4 {wslot(t)}, v{vW}, {sr(rWD,4)}, s{sT0} offen {wfl}"))
    def wo_load():
        t = len(wol)
        I(f"s_lshl_b32 s{sT0}, s{sR}, 7"); I(f"s_lshl_b32 s{sT1}, s{sW}, 5"); I(f"s_addk_i32 s{sT1}, {4*t}")
        I(f"s_add_u32 s{sT0}, s{sT0}, s{sT1}"); I(f"s_mul_i32 s{sT0}, s{sT0}, 1152")
        wol.append(P.vm(f"buffer_load_dwordx4 {vr(TB+4*t,4)}, v{vW}, {sr(rWO,4)}, s{sT0} offen {wfl}"))

    for t in range(18):
        if len(tl) < 18: P.pace(D0); tile_load()
        else: P.pace(D); k_load()
        build_a(AA[t % 2], X + t, 0)
        P.wait(tl[t])
        mfma(vr(TACC,4), vr(AA[t%2],4), vr(TB+4*t,4), "0" if t == 0 else vr(TACC,4))
    stamp()
    P.vm(f"buffer_store_dwordx4 {vr(CLR,4)}, v{vD}, {sr(rWS,4)}, s{sOown} offen sc1")
    P.vm(f"buffer_store_dwordx4 {vr(CLR,4)}, v{vDy}, {sr(rWS,4)}, s{sYown} offen sc1")
    P.vm(f"buffer_store_dwordx2 {vr(CLR,2)}, v{vOff0}, {sr(rWS,4)}, s{sStOwn} offen sc1")
    last_store = P.vm(f"buffer_store_dwordx4 {vr(TACC,4)}, v{vD}, {sr(rWS,4)}, s{sQGU} offen sc1")
    while not P.isdone(last_store): P.pace(D); k_load()
    I("s_barrier")
    I(f"s_cmp_lg_u32 s{sW}, 0"); I("s_cbranch_scc1 L_noflag")
    P.region = "flag"
    I(f"s_lshl_b32 s{sT0}, s{sR}, 3"); I(f"v_mov_b32 v{vT0}, 1")
    P.vm(f"buffer_atomic_add v{vT0}, v{vOff0}, {sr(rDBG,4)}, s{sT0} offen sc1", counted=False)
    P.region = None
    I("L_noflag:")
    stamp()
    for _ in range(gap1): P.pace(D); k_load()
    vCnt = vT2
    I(f"s_lshl_b32 s{sCnt}, s{sR}, 3"); I(f"v_mov_b32 v{vT1}, 0")
    cnt_txt = f"buffer_load_dword v{vCnt}, v{vT1}, {sr(rDBG,4)}, s{sCnt} offen sc1"
    c = P.vm(cnt_txt)
    while not P.isdone(c): P.pace(D); k_load()
    chk = f"v_cmp_ne_u32 vcc, 8, v{vCnt}"
    I(chk); I("s_cbranch_vccnz L_r1"); I("L_c1:")
    retry.append(("L_r1", "L_c1", [cnt_txt], [chk]))
    I(f"v_lshrrev_b32 v{vT0}, 2, v{vI}"); I(f"v_lshlrev_b32 v{vT0}, 12, v{vT0}")
    I(f"v_and_b32 v{vT1}, 3, v{vI}"); I(f"v_lshl_add_u32 v{vT0}, v{vT1}, 5, v{vT0}"); I(f"v_lshl_add_u32 v{vT0}, v{vG}, 7, v{vT0}")
    I(f"s_lshl_b32 s{sT0}, s{sR}, 14")
    ql = [P.vm(f"buffer_load_dwordx4 {vr(G+4*n,4)}, v{vT0}, {sr(rWS,4)}, s{sT0} offen offset:{(n//2)*2048 + (n%2)*16} sc1") for n in range(4)]
    while not P.isdone(ql[3]): P.pace(D); k_load()
    stamp()
    for k in range(0, 8, 2): I(f"v_pk_add_f32 {vr(G+k,2)}, {vr(G+k,2)}, {vr(G+8+k,2)}")
    for st in (4, 8):
        for k in range(8): I(f"v_add_f32_dpp v{G+k}, v{G+k}, v{G+k} row_ror:{st} {DPPF}")
    for k in range(4): I(f"v_cvt_pk_bf16_f32 v{G+8+k}, v{G+2*k}, v{G+2*k+1}")
    I(f"v_lshrrev_b32 v{vT0}, 2, v{vI}")
    for t in range(4):
        I(f"v_cmp_eq_u32 vcc, {t}, v{vT0}")
        for k in range(4): I(f"v_cndmask_b32 v{Bq+4*t+k}, 0, v{G+8+k}, vcc")
    I(f"v_mov_b32 v{vMx}, 0xff800000")

    qk_done = [0]
    def qk_finish(n):
        d = QK[n % 2]
        I(f"v_add_f32_dpp v{vT0}, v{d+1}, v{d} quad_perm:[1,1,1,1] {DPPF}")
        I(f"v_add_f32_dpp v{vT1}, v{d+3}, v{d+2} quad_perm:[3,3,3,3] {DPPF}")
        I(f"v_add_f32_dpp v{S+n}, v{vT1}, v{vT0} quad_perm:[2,2,2,2] {DPPF}")
        if round_s: rne(S+n, S+n)
        I(f"v_mul_f32 v{S+n}, {f32(128**-0.5)}, v{S+n}")
        if round_s: rne(S+n, S+n)
        I(f"v_max_f32 v{vMx}, v{vMx}, v{S+n}")
    def qk_step(limit):
        cnt = 0
        while cnt < limit and qk_done[0] < len(kl) and P.isdone(kl[qk_done[0]]):
            k = qk_done[0]; n, t = divmod(k, 4); d = QK[n % 2]
            mfma(vr(d,4), ar(4*k,4), vr(Bq+4*t,4), "0" if t == 0 else vr(d,4))
            if t == 3 and n > 0: qk_finish(n - 1)
            qk_done[0] += 1; cnt += 1
    while qk_done[0] < 64:
        P.pace(D)
        if len(kl) < 64: k_load()
        else:
            assert len(vl) < 16 or qk_done[0] > len(vl) - 16
            v_load()
        qk_step(qk_rate)
    qk_finish(15)
    stamp()
    rowred("v_max_f32", vMx, (8, 4)); cross("v_max_f32", vMx, vT1)
    I(f"v_mov_b32_dpp v{vST}, v{vMx} quad_perm:[0,0,0,0] {DPPF}")
    I(f"v_mul_f32 v{vT2}, 0xbfb8aa3b, v{vST}")
    I(f"s_mov_b32 s{sT3}, 0x3fb8aa3b")
    I(f"v_mov_b32 v{vL}, 0")
    for n in range(16):
        I(f"v_fma_f32 v{S+n}, v{S+n}, s{sT3}, v{vT2}"); I(f"v_exp_f32 v{S+n}, v{S+n}")
        if n % 4 == 3: P.pace(D); v_load()
    for n in range(16):
        I(f"v_add_f32 v{vL}, v{vL}, v{S+n}"); I(f"v_cvt_pk_bf16_f32 v{S+n}, v{S+n}, v{S+n}")
    rowred("v_add_f32", vL, (8, 4)); cross("v_add_f32", vL, vT1)
    I(f"v_mov_b32 v{vST+1}, v{vL}")
    P.vm(f"buffer_store_dwordx2 {vr(vST,2)}, v{vOff0}, {sr(rWS,4)}, s{sStOwn} offen sc1")
    stamp()

    pv_done = [0]; a_built = [-1]
    def pv_build(k):
        if a_built[0] < k:
            n, t = divmod(k, 4); build_a(AA[k % 2], S + n, 4*t); a_built[0] = k
    def pv_step(limit):
        cnt = 0
        while cnt < limit and pv_done[0] < len(vl) and P.isdone(vl[pv_done[0]]):
            k = pv_done[0]; pv_build(k)
            mfma(vr(PV,4), vr(AA[k%2],4), vslot(k), "0" if k == 0 else vr(PV,4))
            pv_done[0] += 1; cnt += 1
            if k + 1 < 64: pv_build(k + 1)
    hl = None; h_ready = False; wd_done = 0; stl = None; f_ready = False; xo = None
    def h_gather():
        I(f"v_lshrrev_b32 v{vT0}, 3, v{vLane}"); I(f"v_and_b32 v{vT1}, 7, v{vLane}"); I(f"v_lshlrev_b32 v{vT1}, 4, v{vT1}")
        I(f"v_lshl_add_u32 v{vT0}, v{vT0}, 11, v{vT1}")
        a = P.vm(f"buffer_load_dwordx4 {vr(G,4)}, v{vT0}, {sr(rWS,4)}, s{sOh} offen offset:512 sc1")
        b = P.vm(f"buffer_load_dwordx4 {vr(G+4,4)}, v{vT0}, {sr(rWS,4)}, s{sOh} offen offset:1024 sc1")
        I(f"v_and_b32 v{vT0}, 7, v{vI}"); I(f"v_lshlrev_b32 v{vT0}, 11, v{vT0}")
        I(f"v_lshrrev_b32 v{vT1}, 3, v{vI}"); I(f"v_lshl_add_u32 v{vT0}, v{vT1}, 6, v{vT0}"); I(f"v_lshl_add_u32 v{vT0}, v{vG}, 2, v{vT0}")
        I(f"s_lshl_b32 s{sT0}, s{sR}, 14"); I(f"s_lshl_b32 s{sT1}, s{sW}, 4"); I(f"s_add_u32 s{sT0}, s{sT0}, s{sT1}")
        return P.vm(f"buffer_load_dword v{G+8}, v{vT0}, {sr(rWS,4)}, s{sT0} offen offset:1536 sc1")
    def h_compute():
        for g in (G, G + 4):
            scatter_reduce(g); I(f"v_add_f32_dpp v{g}, v{g}, v{g} row_ror:8 {DPPF}"); rne(g, g)
        I(f"v_max_f32 v{G}, 0, v{G}"); I(f"v_mul_f32 v{G}, v{G}, v{G+4}"); I(f"v_cvt_pk_bf16_f32 v{H}, v{G}, v{G}")
        r = G + 8
        I(f"v_add_f32_dpp v{r}, v{r}, v{r} quad_perm:[1,0,3,2] {DPPF}"); I(f"v_add_f32_dpp v{r}, v{r}, v{r} quad_perm:[2,3,0,1] {DPPF}")
        I(f"v_add_f32_dpp v{r}, v{r}, v{r} row_half_mirror {DPPF}"); rne(r, r)
        I(f"v_max_f32 v{r+1}, 0, v{r}"); I(f"v_mul_f32_dpp v{r}, v{r}, v{r+1} row_ror:8 {DPPF}"); I(f"v_cvt_pk_bf16_f32 v{H+1}, v{r}, v{r}")
    AW = [RAW, RAW + 4]
    st_txt = [f"buffer_load_dwordx2 {vr(vP2,2)}, v{vT3}, {sr(rWS,4)}, s{sStH} offen sc1",
              f"buffer_load_dword v{vP3}, v{vT3}, {sr(rDBG,4)}, 0 offen sc1"]
    st_chk = [f"v_max_u32 v{vP3+1}, v{vP2}, v{vP2+1}", f"v_cmp_eq_u32 vcc, -1, v{vP3+1}", f"v_cmp_ne_u32 {sr(sEx)}, 8, v{vP3}", f"s_or_b64 vcc, vcc, {sr(sEx)}"]
    def f_compute():
        a, b = vP2, vP2 + 1
        I(f"v_mov_b32 v{vT0}, v{a}"); rowred("v_max_f32", vT0, (8, 4, 2, 1)); cross("v_max_f32", vT0, vT1, (16,))
        I(f"v_sub_f32 v{a}, v{a}, v{vT0}"); I(f"v_sub_f32 v{vF}, v{vST}, v{vT0}")
        I(f"v_mul_f32 v{a}, 0x3fb8aa3b, v{a}"); I(f"v_mul_f32 v{vF}, 0x3fb8aa3b, v{vF}")
        I(f"v_exp_f32 v{a}, v{a}"); I(f"v_exp_f32 v{vF}, v{vF}")
        I(f"v_mul_f32 v{a}, v{a}, v{b}"); rowred("v_add_f32", a, (8, 4, 2, 1)); cross("v_add_f32", a, vT1, (16,))
        I(f"v_rcp_f32 v{a}, v{a}"); I(f"v_mul_f32 v{vF}, v{vF}, v{a}")
    v0 = len(vl)
    while len(vl) < 64 or len(wol) < 8:
        P.pace(D)
        if hl is not None and len(wdl) < 9: wd_load()
        elif len(vl) < 64: v_load()
        else: wo_load()
        if hl is None and len(vl) >= max(wd_at, v0 + 1):
            assert qk_done[0] == 64
            hl = h_gather()
            xo = P.vm(f"buffer_load_ushort v{vXo}, v{vOut}, {sr(rX,4)}, s{sC} offen")
        if hl is not None and not h_ready and P.isdone(hl): h_compute(); h_ready = True
        if h_ready and wd_done < 9 and len(wdl) == 9 and P.isdone(wdl[8]):
            for t in range(9):
                build_a(AW[t % 2], H + (t // 8), t % 8)
                mfma(vr(Y,4), vr(AW[t%2],4), wslot(t), "0" if t == 0 else vr(Y,4))
            wd_done = 9
        if stl is None and len(vl) >= st_at:
            I(f"v_and_b32 v{vT3}, 31, v{vLane}"); I(f"v_lshlrev_b32 v{vT3}, 3, v{vT3}")
            stl = [P.vm(x) for x in st_txt]
        if stl is not None and not f_ready and P.isdone(stl[1]):
            I("\n".join(st_chk)); I("s_cbranch_vccnz L_r2"); I("L_c2:")
            retry.append(("L_r2", "L_c2", st_txt, st_chk))
            f_compute(); f_ready = True
            I(f"v_lshlrev_b32 v{vXo}, 16, v{vXo}")
        pv_step(6)
    assert wd_done == 9 and f_ready
    stamp()
    while pv_done[0] < 64:
        pv_build(pv_done[0]); P.wait(vl[pv_done[0]]); pv_step(1)
    for k in range(4): I(f"v_mul_f32 v{PV+k}, v{vF}, v{PV+k}")
    P.vm(f"buffer_store_dwordx4 {vr(PV,4)}, v{vD}, {sr(rWS,4)}, s{sOown} offen sc1")
    stamp()
    I(f"s_add_u32 s{sT0}, s{sOh}, {WS_O}"); I(f"s_add_u32 s{sT1}, s{sOh}, {WS_O + 8192}")
    I(f"s_mov_b32 s{sCnt}, {SPIN}")
    I("L_p1:")
    for n in range(4):
        P.vm(f"buffer_load_dwordx4 {vr(G+4*n,4)}, v{vOg if n % 2 == 0 else vOg2}, {sr(rWS,4)}, s{sT0 + n//2} offen sc1")
    P.waitall()
    I(f"v_max3_u32 v{vT0}, v{G}, v{G+1}, v{G+2}")
    I(f"v_max3_u32 v{vT1}, v{G+3}, v{G+4}, v{G+5}")
    I(f"v_max3_u32 v{vT2}, v{G+6}, v{G+7}, v{G+8}")
    I(f"v_max3_u32 v{vT3}, v{G+9}, v{G+10}, v{G+11}")
    I(f"v_max3_u32 v{vT0}, v{vT0}, v{G+12}, v{G+13}")
    I(f"v_max3_u32 v{vT1}, v{vT1}, v{G+14}, v{G+15}")
    I(f"v_max3_u32 v{vT0}, v{vT0}, v{vT1}, v{vT2}")
    I(f"v_max_u32 v{vT0}, v{vT0}, v{vT3}")
    I(f"v_cmp_eq_u32 vcc, -1, v{vT0}")
    I("s_cbranch_vccz L_g1")
    P.region = "p1"
    I(f"s_sub_u32 s{sCnt}, s{sCnt}, 1"); I(f"s_cmp_lg_u32 s{sCnt}, 0"); I("s_cbranch_scc1 L_p1")
    P.region = None
    I("L_g1:")
    for k in (0, 2): I(f"v_pk_add_f32 {vr(G+k,2)}, {vr(G+k,2)}, {vr(G+4+k,2)}"); I(f"v_pk_add_f32 {vr(G+8+k,2)}, {vr(G+8+k,2)}, {vr(G+12+k,2)}")
    for k in (0, 2): I(f"v_pk_add_f32 {vr(G+k,2)}, {vr(G+k,2)}, {vr(G+8+k,2)}")
    scatter_reduce(G); I(f"v_add_f32_dpp v{G}, v{G}, v{G} row_ror:8 {DPPF}")
    I(f"v_cvt_pk_bf16_f32 v{H}, v{G}, v{G}")
    AB = [AA[0], AA[1], RAW, RAW + 4, G + 4, G + 8, G + 12, QK[0]]
    for t in range(8): build_a(AB[t], H, t)
    for t in range(8): mfma(vr(Y,4), vr(AB[t],4), vr(TB+4*t,4), vr(Y,4))
    P.vm(f"buffer_store_dwordx4 {vr(Y,4)}, v{vDy}, {sr(rWS,4)}, s{sYown} offen sc1")
    stamp()
    I(f"s_cmp_lg_u32 s{sW}, 0"); I("s_cbranch_scc1 L_fin"); I(f"s_cmp_ge_u32 s{sR}, 18"); I("s_cbranch_scc1 L_fin")
    P.region = "cons"
    I(f"s_add_u32 s{sT1}, s{sYs}, {64*YSLOT}")
    I(f"s_mov_b32 s{sCnt}, {SPIN}")
    I("L_p2:")
    P.vm(f"buffer_load_dwordx4 {vr(G,4)}, v{vYg}, {sr(rWS,4)}, s{sYs} offen sc1")
    P.vm(f"buffer_load_dwordx4 {vr(G+4,4)}, v{vYg}, {sr(rWS,4)}, s{sT1} offen sc1")
    P.waitall()
    I(f"v_max3_u32 v{vT0}, v{G}, v{G+1}, v{G+2}")
    I(f"v_max3_u32 v{vT1}, v{G+3}, v{G+4}, v{G+5}")
    I(f"v_max3_u32 v{vT0}, v{vT0}, v{G+6}, v{G+7}")
    I(f"v_max_u32 v{vT0}, v{vT0}, v{vT1}")
    I(f"v_cmp_eq_u32 vcc, -1, v{vT0}")
    I("s_cbranch_vccz L_g2")
    I(f"s_sub_u32 s{sCnt}, s{sCnt}, 1"); I(f"s_cmp_lg_u32 s{sCnt}, 0"); I("s_cbranch_scc1 L_p2")
    I("L_g2:")
    for k in (0, 2): I(f"v_pk_add_f32 {vr(G+k,2)}, {vr(G+k,2)}, {vr(G+4+k,2)}")
    scatter_reduce(G); rowred("v_add_f32", G, (8, 4, 2, 1))
    I(f"v_add_f32 v{G}, v{G}, v{vXo}"); I(f"v_cvt_pk_bf16_f32 v{G}, v{G}, v{G}")
    P.vm(f"buffer_store_short v{G}, v{vOut}, {sr(rOUT,4)}, s{sC} offen")
    P.region = None
    I("L_fin:")
    if stamps:
        stamp()
        I(f"v_mov_b32 v{vT0}, 0")
        I(f"s_getreg_b32 s{sT0}, hwreg(HW_REG_XCC_ID)"); I(f"v_writelane_b32 v{vT0}, s{sT0}, 15")
        for k in range(nst[0]): I(f"v_writelane_b32 v{vT0}, s{sStamp+k}, {k}")
        I(f"s_lshr_b32 s{sT0}, s{sQGU}, 3"); I(f"s_add_u32 s{sT0}, s{sT0}, {WS_STAMP}")
        I(f"v_lshlrev_b32 v{vT1}, 2, v{vLane}"); I("s_mov_b64 exec, 0xffff")
        P.vm(f"buffer_store_dword v{vT0}, v{vT1}, {sr(rWS,4)}, s{sT0} offen")
    I("s_endpgm")
    for lab, back, loads, chk in retry:
        I(f"{lab}:"); I("s_nop 7"); I(f"s_mov_b32 s{sT2}, {SPIN}"); I(f"{lab}_l:")
        for x in loads: I(x)
        I("s_waitcnt vmcnt(0)")
        for x in chk: I(x)
        I("s_nop 7"); I(f"s_cbranch_vccz {back}")
        I(f"s_sub_u32 s{sT2}, s{sT2}, 1"); I(f"s_cmp_lg_u32 s{sT2}, 0"); I(f"s_cbranch_scc1 {lab}_l"); I(f"s_branch {back}")
    I("L_end:"); I("s_endpgm")

    head = open("cdna_kernels/" + NAME + ".s.ref").read().split("\n")
    head = [l for l in head if l.startswith(";") and "@launch" not in l and "Override launch" not in l and "grid=ceil" not in l]
    out = head + ["; @launch grid=(256,1,1) block=(256,1,1) lds=0",
                  '.amdgcn_target "amdgcn-amd-amdhsa--gfx950"', ".text", f".globl {KN}", ".p2align 8", f".type {KN},@function", f"{KN}:"]
    tail = ['.section .rodata,"a"', ".p2align 6", f".amdhsa_kernel {KN}", "  .amdhsa_next_free_vgpr 512", "  .amdhsa_next_free_sgpr 102",
            "  .amdhsa_accum_offset 256", "  .amdhsa_group_segment_fixed_size 0", "  .amdhsa_kernarg_size 96", "  .amdhsa_user_sgpr_count 2",
            "  .amdhsa_user_sgpr_kernarg_segment_ptr 1", "  .amdhsa_system_sgpr_workgroup_id_x 1", "  .amdhsa_float_denorm_mode_32 3", ".end_amdhsa_kernel"]
    return "\n".join(out) + "\n" + P.text() + "\n".join(tail) + "\n"

if __name__ == "__main__":
    for spec in sys.argv[1:]:
        name, _, kv = spec.partition(":")
        d = {}
        for p in kv.split(","):
            if not p: continue
            k, v = p.split("=")
            d[k] = int(v) if v.lstrip("-").isdigit() else v.replace("_", " ")
        open(name, "w").write(gen(**d))
```

```python
import struct, sys
from asmlib import Prog
NAME = "parallel_sum__mha_block_cached__glu_gated_reglu__decode"
KN = NAME + "_kernel"

OOB = 0x40000000
WS_QGU, WS_O, WS_Y, WS_STAT, WS_STAMP = 0, 0x80000, 0x100000, 0x180000, 0x200000
YSLOT = 384
L_STAT, L_O, L_Y, L_END = 0, 256, 2560, 4608
SPIN = 400000

def f32(x): return '0x%08x' % struct.unpack('<I', struct.pack('<f', x))[0]

def gen(D=12, D0=12, kfl="nt", tfl="nt", wfl="nt", sfl="sc0 sc1", gap1=22, cgap=4, qk_rate=6, wd_at=24, st_at=36, wo_at=64,
        stamps=False, calib=0, pf=True, round_s=True, local=1, wo_wait=1, notail=0, late_stamps=0, sbar=3, cmode='s'):
    P = Prog(); I = P.I
    nv = [1]
    def V(n=1, al=1):
        a = (nv[0] + al - 1) // al * al; nv[0] = a + n; return a
    vLane, vG, vI, vT0, vT1, vT2, vT3 = (V() for _ in range(7))
    vK, vV, vW, vD, vDq, vDy, vDw, vClr, vOut, vYg, vOg, vXoff = (V() for _ in range(12))
    vMx, vL, vF, vXo, vPf, vStamp, vSl = (V() for _ in range(7))
    vTA = V(2, 2); vP2 = V(2, 2); vP3 = V(2, 2)
    vST = V(4, 4); SG = V(4, 4)
    M = V(4, 4); S = V(16, 4); Bq = V(16, 4)
    QK = [V(4, 4), V(4, 4)]; PV = V(4, 4); Y = V(4, 4); TACC = V(4, 4)
    AA = [V(4, 4), V(4, 4)]
    CLR = V(4, 4)
    X = V(18, 2); F = V(20, 4); RAW = V(12, 4)
    TB = V(72, 4)
    G = F; H = X
    assert nv[0] <= 256, nv[0]
    def vr(a, n): return f"v[{a}:{a+n-1}]"
    def ar(a, n): return f"a[{a}:{a+n-1}]"
    sX, sKp, sVp, sWq, sWo, sWg, sWu, sWd, sOut, sDbg, sWs = 4, 6, 8, 10, 12, 16, 18, 20, 22, 24, 26
    rK, rV, rX, rWO, rWD, rWS, rOUT, rDBG = 28, 32, 36, 40, 44, 48, 52, 56
    sPC = 60; sR, sS, sW, sU = 62, 63, 64, 65
    sA, sB, sStr = 66, 68, 70
    sT0, sT1, sT2, sT3, sSo, sCnt = 72, 73, 74, 75, 76, 77
    sQGU, sOown, sOh, sYown, sYs, sStOwn, sStH, sC = 78, 79, 80, 81, 82, 83, 84, 85
    sEx = 86; sXcc, sLoc, sClr, sFlag, sOg, sOne = 88, 89, 90, 91, 92, 93
    def sr(a, n=2): return f"s[{a}:{a+n-1}]"
    snames = []
    def stamp(name, sreg=None):
        if not stamps: return
        if late_stamps and name in ("x", "LN"): return
        if sreg is None: I("s_memrealtime s[100:101]"); I("s_waitcnt lgkmcnt(0)"); sreg = "s100"
        I(f"v_writelane_b32 v{vStamp}, {sreg}, {len(snames)}"); snames.append(name)
        assert len(snames) <= 31
    retry = []
    DPPF = "row_mask:0xf bank_mask:0xf"
    def lo32(): I("s_mov_b32 exec_hi, 0")
    def full(): I("s_mov_b64 exec, -1")
    def rne(dst, src):
        I(f"v_cvt_pk_bf16_f32 v{dst}, v{src}, v{src}"); I(f"v_and_b32 v{dst}, 0xffff0000, v{dst}")
    def rowred(op, v, steps):
        for s_ in steps: I(f"{op}_dpp v{v}, v{v}, v{v} row_ror:{s_} {DPPF}")
    def cross(op, v, t, which=(16, 32)):
        for x in which:
            I(f"v_mov_b32 v{t}, v{v}"); I(f"v_permlane{x}_swap_b32 v{t}, v{v}"); I(f"{op} v{v}, v{t}, v{v}")
    def build_a(a, src, lane):
        for w in range(4): I(f"v_and_b32_dpp v{a+w}, v{src}, v{M+w} row_newbcast:{lane} {DPPF}")
    def mfma(d, a, b, c): I(f"v_mfma_f32_16x16x32_bf16 {d}, {a}, {b}, {c}")
    def scatter_reduce(g):
        I(f"v_permlane32_swap_b32 v{g}, v{g+2}"); I(f"v_permlane32_swap_b32 v{g+1}, v{g+3}")
        I(f"v_add_f32 v{g}, v{g}, v{g+2}"); I(f"v_add_f32 v{g+1}, v{g+1}, v{g+3}")
        I(f"v_permlane16_swap_b32 v{g}, v{g+1}"); I(f"v_add_f32 v{g}, v{g}, v{g+1}")
    def sel(dst, lim, src, val):
        I(f"v_cmp_gt_u32 vcc, {lim}, v{src}"); I(f"v_cndmask_b32 v{dst}, v{vT3}, v{val}, vcc")

    I("s_cmp_ge_u32 s2, 256"); I("s_cbranch_scc1 L_end")
    I("s_load_dwordx16 s[4:19], s[0:1], 0"); I("s_load_dwordx8 s[20:27], s[0:1], 64")
    I(f"s_getpc_b64 {sr(sPC)}"); I("L_pc:")
    if calib: I("s_memrealtime s[98:99]")
    if stamps: I("s_memrealtime s[100:101]"); I(f"v_mov_b32 v{vStamp}, 0")
    I(f"v_lshrrev_b32 v{vT0}, 6, v0"); I(f"v_and_b32 v{vLane}, 63, v0")
    I(f"s_lshr_b32 s{sU}, s2, 3")
    I(f"v_readfirstlane_b32 s{sW}, v{vT0}")
    if pf:
        I(f"v_lshl_add_u32 v{vT1}, s{sU}, 2, v{vT0}")
        I(f"v_lshlrev_b32 v{vT1}, 7, v{vT1}")
        I(f"v_lshl_add_u32 v{vT1}, v{vLane}, 6, v{vT1}")
        I(f"v_min_u32 v{vT1}, L_end-L_pc, v{vT1}")
        I("s_mov_b64 exec, 3")
        P.vm(f"global_load_dword v{vPf}, v{vT1}, {sr(sPC)}")
        full()
    I(f"s_and_b32 s{sR}, s2, 7"); I(f"s_lshl_b32 s{sR}, s{sR}, 2"); I(f"s_lshr_b32 s{sT0}, s2, 6"); I(f"s_add_u32 s{sR}, s{sR}, s{sT0}")
    I(f"s_and_b32 s{sS}, s{sU}, 7")
    I(f"v_lshrrev_b32 v{vG}, 4, v{vLane}"); I(f"v_and_b32 v{vI}, 15, v{vLane}")
    I(f"v_add_u32 v{vT0}, s{sS}, v{vI}"); I(f"v_and_b32 v{vT0}, 7, v{vT0}"); I(f"v_mul_u32_u24 v{vT0}, 144, v{vT0}")
    I(f"v_mad_u32_u24 v{vXoff}, v{vG}, 36, v{vT0}")
    I(f"s_cmp_eq_u32 s{sW}, 0"); I(f"s_movk_i32 s{sStr}, 0x2400"); I(f"s_cselect_b32 s{sStr}, 0x2000, s{sStr}"); I(f"s_mov_b32 s{sStr+1}, 0")
    I(f"s_lshl_b32 s{sT2}, s{sR}, 8"); I(f"s_lshl_b32 s{sT3}, s{sR}, 5"); I(f"s_addk_i32 s{sT3}, 0x2000")
    I(f"s_cmp_eq_u32 s{sW}, 3"); I(f"s_cselect_b32 s{sT2}, s{sT3}, s{sT2}"); I(f"s_cselect_b32 s{sT1}, 1, 15")
    I(f"s_mul_i32 s{sT0}, s{sS}, 72")
    I(f"v_mad_u32_u24 v{vT0}, v{vG}, 18, s{sT0}"); I(f"v_mul_u32_u24 v{vT0}, s{sStr}, v{vT0}")
    I(f"v_and_b32 v{vT1}, s{sT1}, v{vI}"); I(f"v_lshl_add_u32 v{vT0}, v{vT1}, 4, v{vT0}"); I(f"v_add_u32 v{vP2}, s{sT2}, v{vT0}")
    I(f"v_mov_b32 v{vP2+1}, 0")
    I(f"v_and_b32 v{vT1}, 2, v{vI}"); I(f"v_cmp_ne_u32 vcc, 0, v{vT1}")
    I(f"s_mov_b32 s{rX+2}, 1152"); I(f"s_mov_b32 s{rX+3}, 0x20000")
    I("s_waitcnt lgkmcnt(0)")
    I(f"s_mov_b32 s{rX}, s{sX}"); I(f"s_mov_b32 s{rX+1}, s{sX+1}")
    xl = [P.vm(f"buffer_load_dwordx4 {vr(RAW,4)}, v{vXoff}, {sr(rX,4)}, 0 offen"),
          P.vm(f"buffer_load_dwordx4 {vr(RAW+4,4)}, v{vXoff}, {sr(rX,4)}, 0 offen offset:16"),
          P.vm(f"buffer_load_dword v{RAW+8}, v{vXoff}, {sr(rX,4)}, 0 offen offset:32")]
    I(f"s_cmp_eq_u32 s{sW}, 0"); I(f"s_cselect_b64 {sr(sA)}, {sr(sWq)}, {sr(sWg)}")
    I(f"s_cmp_eq_u32 s{sW}, 2"); I(f"s_cselect_b64 {sr(sA)}, {sr(sWu)}, {sr(sA)}")
    I(f"s_cmp_eq_u32 s{sW}, 3"); I(f"s_cselect_b64 {sr(sB)}, {sr(sWu)}, {sr(sA)}")
    I(f"v_mov_b32 v{vT0}, s{sA}"); I(f"v_mov_b32 v{vT1}, s{sA+1}"); I(f"v_mov_b32 v{vT2}, s{sB}"); I(f"v_mov_b32 v{vT3}, s{sB+1}")
    I(f"v_cndmask_b32 v{vTA}, v{vT0}, v{vT2}, vcc"); I(f"v_cndmask_b32 v{vTA+1}, v{vT1}, v{vT3}, vcc")
    I(f"v_lshl_add_u64 {vr(vTA,2)}, {vr(vTA,2)}, 0, {vr(vP2,2)}")
    tl = []
    def tile_load():
        t = len(tl)
        tl.append(P.vm(f"global_load_dwordx4 {vr(TB+4*t,4)}, {vr(vTA,2)}, off {tfl}"))
        if t < 17: I(f"v_lshl_add_u64 {vr(vTA,2)}, {vr(vTA,2)}, 0, {sr(sStr)}")
    while P.nvm < D0 - 1: tile_load()

    for r_, p_, n_ in ((rWS, sWs, 0x1000000), (rOUT, sOut, 1152), (rDBG, sDbg, 256)):
        I(f"s_mov_b32 s{r_}, s{p_}"); I(f"s_mov_b32 s{r_+1}, s{p_+1}"); I(f"s_mov_b32 s{r_+2}, {n_}"); I(f"s_mov_b32 s{r_+3}, 0x20000")
    I(f"s_lshl_b32 s{sT0}, s{sR}, 3"); I(f"s_add_u32 s{sT0}, s{sT0}, s{sS}")
    I(f"s_lshl_b32 s{sOown}, s{sT0}, 9"); I(f"s_add_u32 s{sOown}, s{sOown}, {WS_O}")
    I(f"s_lshl_b32 s{sStOwn}, s{sT0}, 7"); I(f"s_add_u32 s{sStOwn}, s{sStOwn}, {WS_STAT}")
    I(f"s_lshl_b32 s{sQGU}, s{sT0}, 11"); I(f"s_lshl_b32 s{sT1}, s{sW}, 9"); I(f"s_add_u32 s{sQGU}, s{sQGU}, s{sT1}")
    I(f"s_mul_i32 s{sYs}, s{sS}, {32*YSLOT}"); I(f"s_add_u32 s{sYs}, s{sYs}, {WS_Y}")
    I(f"s_mul_i32 s{sT1}, s{sR}, {YSLOT}"); I(f"s_add_u32 s{sYown}, s{sYs}, s{sT1}")
    I(f"s_cmp_eq_u32 s{sW}, 1"); I(f"s_cselect_b32 s{sClr}, s{sYown}, s{sOown}"); I(f"s_cselect_b32 s{sT1}, 24, 32")
    I(f"s_cmp_eq_u32 s{sW}, 2"); I(f"s_cselect_b32 s{sClr}, s{sStOwn}, s{sClr}"); I(f"s_cselect_b32 s{sT1}, 8, s{sT1}")
    I(f"s_cmp_eq_u32 s{sW}, 3"); I(f"s_cselect_b32 s{sT1}, 0, s{sT1}"); I(f"s_cselect_b32 s{sT2}, 4, 16")
    I(f"v_mov_b32 v{vT3}, {OOB}")
    I(f"v_lshlrev_b32 v{vV}, 4, v{vLane}")
    sel(vClr, f"s{sT1}", vLane, vV)
    for w in range(4): I(f"v_mov_b32 v{CLR+w}, -1")
    P.vm(f"buffer_store_dwordx4 {vr(CLR,4)}, v{vClr}, {sr(rWS,4)}, s{sClr} offen {sfl}")
    I(f"v_lshlrev_b32 v{vT0}, 5, v{vI}"); I(f"v_lshl_add_u32 v{vT0}, v{vG}, 4, v{vT0}")
    I(f"s_lshl_b32 s{sT1}, s{sW}, 9"); I(f"v_add_u32 v{vDw}, s{sT1}, v{vT0}")
    sel(vD, 32, vLane, vT0); sel(vDq, f"s{sT2}", vI, vD); sel(vDy, 12, vI, vD)
    I(f"s_lshl_b32 s{sT0}, s{sR}, 21"); I(f"s_lshl_b32 s{sT1}, s{sS}, 18"); I(f"s_add_u32 s{sT0}, s{sT0}, s{sT1}")
    I(f"s_lshl_b32 s{sT1}, s{sW}, 12"); I(f"s_add_u32 s{sT0}, s{sT0}, s{sT1}")
    for r_, p_ in ((rK, sKp), (rV, sVp)):
        I(f"s_add_u32 s{r_}, s{p_}, s{sT0}"); I(f"s_addc_u32 s{r_+1}, s{p_+1}, 0")
        I(f"s_mov_b32 s{r_+2}, {(256<<10) - 3*4096}"); I(f"s_mov_b32 s{r_+3}, 0x20000")
    I(f"s_mul_i32 s{sT0}, s{sS}, 144")
    for r_, p_, n_ in ((rWO, sWo, 4096*1152), (rWD, sWd, 4608*1152)):
        I(f"s_add_u32 s{r_}, s{p_}, s{sT0}"); I(f"s_addc_u32 s{r_+1}, s{p_+1}, 0")
        I(f"s_sub_u32 s{r_+2}, {n_}, s{sT0}"); I(f"s_mov_b32 s{r_+3}, 0x20000")
    I(f"s_lshl_b32 s{sStH}, s{sR}, 10"); I(f"s_add_u32 s{sStH}, s{sStH}, {WS_STAT}")
    I(f"s_lshl_b32 s{sT1}, s{sW}, 7")
    I(f"s_lshl_b32 s{sOh}, s{sR}, 14"); I(f"s_add_u32 s{sOh}, s{sOh}, s{sT1}")
    I(f"s_lshl_b32 s{sOg}, s{sR}, 12"); I(f"s_add_u32 s{sOg}, s{sOg}, s{sT1}"); I(f"s_add_u32 s{sOg}, s{sOg}, {WS_O}")
    I(f"s_lshl_b32 s{sT1}, s{sR}, 5"); I(f"s_add_u32 s{sYs}, s{sYs}, s{sT1}")
    I(f"s_mul_i32 s{sC}, s{sS}, 144"); I(f"s_lshl_b32 s{sT1}, s{sR}, 4"); I(f"s_add_u32 s{sC}, s{sC}, s{sT1}")
    I(f"s_getreg_b32 s{sXcc}, hwreg(HW_REG_XCC_ID)")
    I(f"v_and_b32 v{vT0}, 3, v{vI}"); I(f"v_lshrrev_b32 v{vT1}, 2, v{vI}")
    I(f"v_lshlrev_b32 v{vK}, 8, v{vT1}"); I(f"v_lshl_add_u32 v{vK}, v{vG}, 6, v{vK}"); I(f"v_lshl_add_u32 v{vK}, v{vT0}, 4, v{vK}")
    I(f"v_lshlrev_b32 v{vT0}, 4, v{vI}"); I(f"v_mad_u32_u24 v{vT0}, v{vG}, s{rX+2}, v{vT0}"); sel(vW, 9, vI, vT0)
    I(f"v_lshlrev_b32 v{vT0}, 1, v{vG}"); I(f"v_lshl_add_u32 v{vT0}, v{vI}, 3, v{vT0}"); sel(vOut, 2, vI, vT0)
    I(f"v_lshrrev_b32 v{vT0}, 1, v{vLane}"); I(f"v_mul_u32_u24 v{vT0}, {YSLOT}, v{vT0}"); I(f"v_and_b32 v{vT1}, 1, v{vLane}"); I(f"v_lshl_add_u32 v{vYg}, v{vT1}, 4, v{vT0}")
    I(f"v_lshrrev_b32 v{vT0}, 3, v{vLane}"); I(f"v_and_b32 v{vT1}, 7, v{vLane}"); I(f"v_lshlrev_b32 v{vT1}, 4, v{vT1}")
    I(f"v_lshl_add_u32 v{vOg}, v{vT0}, 9, v{vT1}")
    I(f"v_lshlrev_b32 v{vT0}, 4, v{vLane}"); I(f"s_lshl_b32 s{sT1}, s{sW}, 4"); I(f"v_add_u32 v{vSl}, s{sT1}, v{vT0}")
    I(f"v_and_b32 v{vT0}, 1, v{vI}"); I(f"v_lshlrev_b32 v{vT0}, 4, v{vT0}"); I(f"v_mov_b32 v{vT1}, 0xffff"); I(f"v_lshlrev_b32 v{vT0}, v{vT0}, v{vT1}")
    I(f"v_lshrrev_b32 v{vT1}, 1, v{vI}")
    for w in range(4):
        I(f"v_cmp_eq_u32 vcc, {w}, v{vT1}"); I(f"v_cndmask_b32 v{M+w}, 0, v{vT0}, vcc")
    I(f"v_mov_b32 v{vST+2}, s{sXcc}"); I(f"v_mov_b32 v{vST+3}, s{sXcc}")
    if stamps: stamp("entry", "s100")

    P.wait(xl[2])
    stamp("x")
    for d in range(9):
        I(f"v_lshlrev_b32 v{F+2*d}, 16, v{RAW+d}"); I(f"v_and_b32 v{F+2*d+1}, 0xffff0000, v{RAW+d}")
    I(f"v_pk_add_f32 {vr(vP3,2)}, {vr(F,2)}, {vr(F+2,2)}")
    for d in range(2, 9): I(f"v_pk_add_f32 {vr(vP3,2)}, {vr(vP3,2)}, {vr(F+2*d,2)}")
    I(f"v_add_f32 v{vT0}, v{vP3}, v{vP3+1}")
    rowred("v_add_f32", vT0, (8, 4, 2, 1)); cross("v_add_f32", vT0, vT1)
    I(f"v_mul_f32 v{vP2}, {f32(1.0/1152)}, v{vT0}"); I(f"v_mov_b32 v{vP2+1}, v{vP2}")
    for d in range(9):
        I(f"v_pk_add_f32 {vr(X+2*d,2)}, {vr(F+2*d,2)}, {vr(vP2,2)} neg_lo:[0,1] neg_hi:[0,1]")
    I(f"v_pk_mul_f32 {vr(vP3,2)}, {vr(X,2)}, {vr(X,2)}")
    for d in range(1, 9): I(f"v_pk_fma_f32 {vr(vP3,2)}, {vr(X+2*d,2)}, {vr(X+2*d,2)}, {vr(vP3,2)}")
    I(f"v_add_f32 v{vT0}, v{vP3}, v{vP3+1}")
    for _ in range(2): P.pace(D0); tile_load()
    rowred("v_add_f32", vT0, (8, 4, 2, 1)); cross("v_add_f32", vT0, vT1)
    I(f"v_mul_f32 v{vT0}, {f32(1.0/1152)}, v{vT0}")
    rne(vT0, vT0); I(f"v_add_f32 v{vT0}, {f32(1e-5)}, v{vT0}"); rne(vT0, vT0)
    I(f"v_sqrt_f32 v{vT0}, v{vT0}"); rne(vT0, vT0); I(f"v_rcp_f32 v{vP3}, v{vT0}")
    rne(vP2, vP2); I(f"v_mov_b32 v{vP2+1}, v{vP2}"); I(f"v_mov_b32 v{vP3+1}, v{vP3}")
    for d in range(9):
        I(f"v_pk_add_f32 {vr(F+2*d,2)}, {vr(F+2*d,2)}, {vr(vP2,2)} neg_lo:[0,1] neg_hi:[0,1]")
    for d in range(9): I(f"v_cvt_pk_bf16_f32 v{RAW+d}, v{F+2*d}, v{F+2*d+1}")
    for _ in range(2): P.pace(D0); tile_load()
    for d in range(9):
        I(f"v_lshlrev_b32 v{F+2*d}, 16, v{RAW+d}"); I(f"v_and_b32 v{F+2*d+1}, 0xffff0000, v{RAW+d}")
    for d in range(9): I(f"v_pk_mul_f32 {vr(F+2*d,2)}, {vr(F+2*d,2)}, {vr(vP3,2)}")
    for t in range(18): I(f"v_cvt_pk_bf16_f32 v{X+t}, v{F+t}, v{F+t}")
    stamp("LN")

    kl, vl, wdl, wol = [], [], [], []
    qk_done = [0]
    def vslot(n): return vr(TB + 4*n, 4) if n < 16 else ar(4*(n-16), 4)
    def kv_load(lst, srd, base, dst):
        n = len(lst); o = (n // 4) * 16384
        if n % 4 == 0: I(f"s_mov_b32 s{sSo}, {o}")
        lst.append(P.vm(f"buffer_load_dwordx4 {dst}, v{base}, {sr(srd,4)}, s{sSo} offen offset:{(n%4)*1024} {kfl}"))
    def k_load(): kv_load(kl, rK, vK, ar(4*len(kl), 4))
    def v_load(): kv_load(vl, rV, vV, vslot(len(vl)))
    def kv_next():
        P.pace(D)
        if len(kl) < 64: k_load()
        else:
            assert len(vl) < 16 or qk_done[0] > len(vl) - 16, "V slot not free yet"
            v_load()
    def wdslot(n): return ar(4*(48+n), 4)
    def woslot(n): return ar(4*(57+n), 4) if (wo_at < 64 and n < 7) else vr(TB+4*n, 4)
    def proj_row(t):
        if t < 8: I(f"s_lshl_b32 s{sT0}, s{sR}, 7"); I(f"s_lshl_b32 s{sT1}, s{sW}, 5"); I(f"s_addk_i32 s{sT1}, {4*t}")
        else:     I(f"s_lshl_b32 s{sT0}, s{sR}, 4"); I(f"s_lshl_b32 s{sT1}, s{sW}, 2"); I(f"s_addk_i32 s{sT1}, 4096")
        I(f"s_add_u32 s{sT0}, s{sT0}, s{sT1}"); I(f"s_mul_i32 s{sT0}, s{sT0}, 1152")
    def wd_load():
        t = len(wdl); proj_row(t)
        wdl.append(P.vm(f"buffer_load_dwordx4 {wdslot(t)}, v{vW}, {sr(rWD,4)}, s{sT0} offen {wfl}"))
    def wo_load():
        t = len(wol); proj_row(t)
        wol.append(P.vm(f"buffer_load_dwordx4 {woslot(t)}, v{vW}, {sr(rWO,4)}, s{sT0} offen {wfl}"))

    for t in range(18):
        if len(tl) < 18: P.pace(D0); tile_load()
        else: P.pace(D); k_load()
        build_a(AA[t % 2], X + t, 0)
        P.wait(tl[t])
        mfma(vr(TACC,4), vr(AA[t%2],4), vr(TB+4*t,4), "0" if t == 0 else vr(TACC,4))
    stamp("tile")
    last_store = P.vm(f"buffer_store_dwordx4 {vr(TACC,4)}, v{vDq}, {sr(rWS,4)}, s{sQGU} offen {sfl}")
    while not P.isdone(last_store): kv_next()
    I("s_barrier")
    I(f"s_lshl_b32 s{sFlag}, s{sR}, 3")
    I(f"s_cmp_lg_u32 s{sW}, 0"); I("s_cbranch_scc1 L_noflag")
    P.region = "flag"
    I(f"s_mov_b32 s{sOne}, 1"); I(f"s_atomic_add s{sOne}, {sr(sDbg)}, s{sFlag}")
    P.region = None
    I("L_noflag:")
    stamp("flag")
    for _ in range(gap1): kv_next()
    if cmode == "s":
        cnt_txt = f"s_load_dword s{sCnt}, {sr(sDbg)}, s{sFlag}"
        I(cnt_txt)
        for _ in range(cgap): kv_next()
        I("s_waitcnt lgkmcnt(0)"); I(f"s_cmp_lt_u32 s{sCnt}, 8"); I("s_cbranch_scc1 L_r1"); I("L_c1:")
    else:
        I(f"v_mov_b32 v{vT1}, 0")
        c = P.vm(f"buffer_load_dword v{vT2}, v{vT1}, {sr(rDBG,4)}, s{sFlag} offen sc1")
        while not P.isdone(c): kv_next()
        I(f"v_cmp_gt_u32 vcc, 8, v{vT2}"); I("s_cbranch_vccnz L_r1"); I("L_c1:")
    retry.append(("L_r1", "L_c1", [f"v_mov_b32 v{vT1}, 0", f"buffer_load_dword v{vT2}, v{vT1}, {sr(rDBG,4)}, s{sFlag} offen sc1", "s_waitcnt vmcnt(0)",
                                   f"v_cmp_gt_u32 vcc, 8, v{vT2}", "s_nop 7", "s_cbranch_vccz L_c1"]))
    I(f"v_lshrrev_b32 v{vT0}, 2, v{vI}"); I(f"v_lshlrev_b32 v{vT0}, 12, v{vT0}")
    I(f"v_and_b32 v{vT1}, 3, v{vI}"); I(f"v_lshl_add_u32 v{vT0}, v{vT1}, 5, v{vT0}"); I(f"v_lshl_add_u32 v{vT0}, v{vG}, 7, v{vT0}")
    I(f"s_lshl_b32 s{sT0}, s{sR}, 14")
    ql = [P.vm(f"buffer_load_dwordx4 {vr(G+4*n,4)}, v{vT0}, {sr(rWS,4)}, s{sT0} offen offset:{(n//2)*2048 + (n%2)*16} sc1") for n in range(4)]
    while not P.isdone(ql[3]): kv_next()
    stamp("q")
    for k in range(0, 8, 2): I(f"v_pk_add_f32 {vr(G+k,2)}, {vr(G+k,2)}, {vr(G+8+k,2)}")
    for st in (4, 8):
        for k in range(8): I(f"v_add_f32_dpp v{G+k}, v{G+k}, v{G+k} row_ror:{st} {DPPF}")
    for k in range(4): I(f"v_cvt_pk_bf16_f32 v{G+8+k}, v{G+2*k}, v{G+2*k+1}")
    I(f"v_lshrrev_b32 v{vT0}, 2, v{vI}")
    for t in range(4):
        I(f"v_cmp_eq_u32 vcc, {t}, v{vT0}")
        for k in range(4): I(f"v_cndmask_b32 v{Bq+4*t+k}, 0, v{G+8+k}, vcc")
    I(f"v_mov_b32 v{vMx}, 0xff800000")

    def qk_finish(n):
        d = QK[n % 2]
        I(f"v_add_f32_dpp v{vT0}, v{d+1}, v{d} quad_perm:[1,1,1,1] {DPPF}")
        I(f"v_add_f32_dpp v{vT1}, v{d+3}, v{d+2} quad_perm:[3,3,3,3] {DPPF}")
        I(f"v_add_f32_dpp v{S+n}, v{vT1}, v{vT0} quad_perm:[2,2,2,2] {DPPF}")
        if round_s: rne(S+n, S+n)
        I(f"v_mul_f32 v{S+n}, {f32(128**-0.5)}, v{S+n}")
        if round_s: rne(S+n, S+n)
        I(f"v_max_f32 v{vMx}, v{vMx}, v{S+n}")
    def qk_step(limit):
        cnt = 0
        while cnt < limit and qk_done[0] < len(kl) and P.isdone(kl[qk_done[0]]):
            k = qk_done[0]; n, t = divmod(k, 4); d = QK[n % 2]
            mfma(vr(d,4), ar(4*k,4), vr(Bq+4*t,4), "0" if t == 0 else vr(d,4))
            if t == 3 and n > 0: qk_finish(n - 1)
            qk_done[0] += 1; cnt += 1
    while qk_done[0] < 64:
        qk_step(qk_rate)
        if qk_done[0] < 64: kv_next()
    qk_finish(15)
    stamp("qk")
    rowred("v_max_f32", vMx, (8, 4)); cross("v_max_f32", vMx, vT1)
    I(f"v_mov_b32_dpp v{vST}, v{vMx} quad_perm:[0,0,0,0] {DPPF}")
    I(f"v_mul_f32 v{vT2}, 0xbfb8aa3b, v{vST}")
    I(f"s_mov_b32 s{sT3}, 0x3fb8aa3b")
    I(f"v_mov_b32 v{vL}, 0")
    for n in range(16):
        I(f"v_fma_f32 v{S+n}, v{S+n}, s{sT3}, v{vT2}"); I(f"v_exp_f32 v{S+n}, v{S+n}")
        if n % 4 == 3: P.pace(D); v_load()
    for n in range(16):
        I(f"v_add_f32 v{vL}, v{vL}, v{S+n}"); I(f"v_cvt_pk_bf16_f32 v{S+n}, v{S+n}, v{S+n}")
    rowred("v_add_f32", vL, (8, 4)); cross("v_add_f32", vL, vT1)
    I(f"v_mov_b32 v{vST+1}, v{vL}")
    I("s_mov_b64 exec, 0x11"); I(f"ds_write_b128 v{vSl}, {vr(vST,4)} offset:{L_STAT}"); full()
    stamp("soft")

    pv_done = [0]; a_built = [-1]
    def pv_build(k):
        if a_built[0] < k:
            n, t = divmod(k, 4); build_a(AA[k % 2], S + n, 4*t); a_built[0] = k
    def pv_step(limit):
        cnt = 0
        while cnt < limit and pv_done[0] < len(vl) and P.isdone(vl[pv_done[0]]):
            k = pv_done[0]; pv_build(k)
            mfma(vr(PV,4), vr(AA[k%2],4), vslot(k), "0" if k == 0 else vr(PV,4))
            pv_done[0] += 1; cnt += 1
            if k + 1 < 64: pv_build(k + 1)
    for _ in range(sbar): P.pace(D); v_load(); pv_step(6)
    I("s_waitcnt lgkmcnt(0)"); I("s_barrier")
    I(f"s_cmp_lg_u32 s{sW}, 0"); I("s_cbranch_scc1 L_nostat")
    P.region = "stat"
    I("s_mov_b64 exec, 0xff"); I(f"ds_read_b128 {vr(SG,4)}, v{vV} offset:{L_STAT}"); I("s_waitcnt lgkmcnt(0)")
    P.vm(f"buffer_store_dwordx4 {vr(SG,4)}, v{vV}, {sr(rWS,4)}, s{sStOwn} offen {sfl}", counted=False); full()
    P.region = None
    I("L_nostat:")

    hl = None; h_ready = False; wd_done = 0; stl = None; f_ready = False; xo = None
    def h_gather():
        I(f"v_lshrrev_b32 v{vT0}, 3, v{vLane}"); I(f"v_and_b32 v{vT1}, 7, v{vLane}"); I(f"v_lshlrev_b32 v{vT1}, 4, v{vT1}")
        I(f"v_lshl_add_u32 v{vT0}, v{vT0}, 11, v{vT1}")
        P.vm(f"buffer_load_dwordx4 {vr(G,4)}, v{vT0}, {sr(rWS,4)}, s{sOh} offen offset:512 sc1")
        P.vm(f"buffer_load_dwordx4 {vr(G+4,4)}, v{vT0}, {sr(rWS,4)}, s{sOh} offen offset:1024 sc1")
        I(f"v_and_b32 v{vT0}, 7, v{vI}"); I(f"v_lshlrev_b32 v{vT0}, 11, v{vT0}")
        I(f"v_lshrrev_b32 v{vT1}, 3, v{vI}"); I(f"v_lshl_add_u32 v{vT0}, v{vT1}, 6, v{vT0}"); I(f"v_lshl_add_u32 v{vT0}, v{vG}, 2, v{vT0}")
        I(f"s_lshl_b32 s{sT0}, s{sR}, 14"); I(f"s_lshl_b32 s{sT1}, s{sW}, 4"); I(f"s_add_u32 s{sT0}, s{sT0}, s{sT1}")
        return P.vm(f"buffer_load_dword v{G+8}, v{vT0}, {sr(rWS,4)}, s{sT0} offen offset:1536 sc1")
    def h_compute():
        for g in (G, G + 4):
            scatter_reduce(g); I(f"v_add_f32_dpp v{g}, v{g}, v{g} row_ror:8 {DPPF}"); rne(g, g)
        I(f"v_max_f32 v{G}, 0, v{G}"); I(f"v_mul_f32 v{G}, v{G}, v{G+4}"); I(f"v_cvt_pk_bf16_f32 v{H}, v{G}, v{G}")
        r = G + 8
        I(f"v_add_f32_dpp v{r}, v{r}, v{r} quad_perm:[1,0,3,2] {DPPF}"); I(f"v_add_f32_dpp v{r}, v{r}, v{r} quad_perm:[2,3,0,1] {DPPF}")
        I(f"v_add_f32_dpp v{r}, v{r}, v{r} row_half_mirror {DPPF}"); rne(r, r)
        I(f"v_max_f32 v{r+1}, 0, v{r}"); I(f"v_mul_f32_dpp v{r}, v{r}, v{r+1} row_ror:8 {DPPF}"); I(f"v_cvt_pk_bf16_f32 v{H+1}, v{r}, v{r}")
    AW = [RAW, RAW + 4]
    st_txt = [f"buffer_load_dwordx3 {vr(SG,3)}, v{vP2}, {sr(rWS,4)}, s{sStH} offen sc1",
              f"buffer_load_dword v{SG+3}, v{vP2+1}, {sr(rDBG,4)}, 0 offen sc1"]
    st_chk = [f"v_max3_u32 v{vP3}, v{SG}, v{SG+1}, v{SG+2}", f"v_cmp_eq_u32 vcc, -1, v{vP3}", f"v_cmp_gt_u32 {sr(sEx)}, 8, v{SG+3}", "s_nop 3", f"s_or_b64 vcc, vcc, {sr(sEx)}"]
    def f_compute():
        a, b = SG, SG + 1
        I(f"v_cmp_ne_u32 vcc, s{sXcc}, v{SG+2}"); I("s_nop 3"); I("s_cmp_eq_u64 vcc, 0"); I(f"s_cselect_b32 s{sLoc}, 1, 0")
        I(f"v_mov_b32 v{vT0}, v{a}"); rowred("v_max_f32", vT0, (8, 4, 2, 1)); cross("v_max_f32", vT0, vT1, (16,))
        I(f"v_sub_f32 v{a}, v{a}, v{vT0}"); I(f"v_sub_f32 v{vF}, v{vST}, v{vT0}")
        I(f"v_mul_f32 v{a}, 0x3fb8aa3b, v{a}"); I(f"v_mul_f32 v{vF}, 0x3fb8aa3b, v{vF}")
        I(f"v_exp_f32 v{a}, v{a}"); I(f"v_exp_f32 v{vF}, v{vF}")
        I(f"v_mul_f32 v{a}, v{a}, v{b}"); rowred("v_add_f32", a, (8, 4, 2, 1)); cross("v_add_f32", a, vT1, (16,))
        I(f"v_rcp_f32 v{a}, v{a}"); I(f"v_mul_f32 v{vF}, v{vF}, v{a}")
    v0 = len(vl)
    while len(vl) < 64 or len(wol) < 8:
        P.pace(D)
        if hl is not None and len(wdl) < 9: wd_load()
        elif len(wol) < 8 and len(vl) >= wo_at and (wo_at == 64 or wd_done == 9): wo_load()
        else: v_load()
        if hl is None and len(vl) >= max(wd_at, v0 + 1):
            hl = h_gather()
            xo = P.vm(f"buffer_load_ushort v{vXo}, v{vOut}, {sr(rX,4)}, s{sC} offen")
        if hl is not None and not h_ready and P.isdone(hl): h_compute(); h_ready = True
        if h_ready and wd_done < 9 and len(wdl) == 9 and P.isdone(wdl[8]):
            for t in range(9):
                build_a(AW[t % 2], H + (t // 8), t % 8)
                mfma(vr(Y,4), vr(AW[t%2],4), wdslot(t), "0" if t == 0 else vr(Y,4))
            wd_done = 9
        if stl is None and len(vl) >= st_at:
            I(f"v_and_b32 v{vT0}, 31, v{vLane}"); I(f"v_lshlrev_b32 v{vP2+1}, 3, v{vT0}")
            I(f"v_lshrrev_b32 v{vT1}, 2, v{vT0}"); I(f"v_and_b32 v{vT0}, 3, v{vT0}"); I(f"v_lshlrev_b32 v{vT0}, 4, v{vT0}"); I(f"v_lshl_add_u32 v{vP2}, v{vT1}, 7, v{vT0}")
            stl = [P.vm(x) for x in st_txt]
        if stl is not None and not f_ready and P.isdone(stl[1]):
            I("\n".join(st_chk)); I("s_cbranch_vccnz L_r2"); I("L_c2:")
            retry.append(("L_r2", "L_c2", st_txt + ["s_waitcnt vmcnt(0)"] + st_chk + ["s_nop 7", "s_cbranch_vccz L_c2"]))
            f_compute(); f_ready = True
            I(f"v_lshlrev_b32 v{vXo}, 16, v{vXo}")
        pv_step(6)
    assert wd_done == 9 and f_ready
    stamp("wo_iss")
    while pv_done[0] < 64:
        pv_build(pv_done[0]); P.wait(vl[pv_done[0]]); pv_step(1)
    for k in range(4): I(f"v_mul_f32 v{PV+k}, v{vF}, v{PV+k}")
    def wg_reduce(acc, lbase, tag, store):
        lo32(); I(f"ds_write_b128 v{vDw}, {vr(acc,4)} offset:{lbase}"); full()
        I("s_waitcnt lgkmcnt(0)"); I("s_barrier")
        I(f"s_cmp_lg_u32 s{sW}, 0"); I(f"s_cbranch_scc1 L_{tag}")
        P.region = tag
        lo32()
        for k in range(3): I(f"ds_read_b128 {vr(G+4*k,4)}, v{vDw} offset:{lbase + 512*(k+1)}")
        I("s_waitcnt lgkmcnt(2)")
        for k in (0, 2): I(f"v_pk_add_f32 {vr(acc+k,2)}, {vr(acc+k,2)}, {vr(G+k,2)}")
        I("s_waitcnt lgkmcnt(0)")
        for k in (0, 2): I(f"v_pk_add_f32 {vr(G+4+k,2)}, {vr(G+4+k,2)}, {vr(G+8+k,2)}")
        for k in (0, 2): I(f"v_pk_add_f32 {vr(acc+k,2)}, {vr(acc+k,2)}, {vr(G+4+k,2)}")
        full()
        store()
        P.region = None
        I(f"L_{tag}:")
    def o_store():
        if local:
            I(f"s_cmp_eq_u32 s{sLoc}, 0"); I("s_cbranch_scc1 L_ofar")
            P.vm(f"buffer_store_dwordx4 {vr(PV,4)}, v{vD}, {sr(rWS,4)}, s{sOown} offen", counted=False)
            I("s_branch L_ored"); I("L_ofar:")
        P.vm(f"buffer_store_dwordx4 {vr(PV,4)}, v{vD}, {sr(rWS,4)}, s{sOown} offen {sfl}", counted=False)
    stamp("pv")
    wg_reduce(PV, L_O, "ored", o_store)
    stamp("Opub")
    if notail: I("s_branch L_fin")
    if wo_wait: P.wait(wol[7])
    stamp("wo_arr")
    I(f"s_mov_b32 s{sCnt}, {SPIN}")
    I("L_p1:")
    P.vm(f"buffer_load_dwordx4 {vr(G,4)}, v{vOg}, {sr(rWS,4)}, s{sOg} offen sc1")
    P.waitall()
    I(f"v_max3_u32 v{vT0}, v{G}, v{G+1}, v{G+2}"); I(f"v_max_u32 v{vT0}, v{vT0}, v{G+3}")
    I(f"v_cmp_eq_u32 vcc, -1, v{vT0}")
    I("s_cbranch_vccz L_g1")
    P.region = "p1"
    I(f"s_sub_u32 s{sCnt}, s{sCnt}, 1"); I(f"s_cmp_lg_u32 s{sCnt}, 0"); I("s_cbranch_scc1 L_p1")
    P.region = None
    I("L_g1:")
    stamp("got1"); stamp("n1", f"s{sCnt}")
    scatter_reduce(G); I(f"v_add_f32_dpp v{G}, v{G}, v{G} row_ror:8 {DPPF}")
    I(f"v_cvt_pk_bf16_f32 v{H}, v{G}, v{G}")
    AB = [AA[0], AA[1], RAW, RAW + 4, G + 4, G + 8, G + 12, QK[0]]
    for t in range(8):
        build_a(AB[t], H, t)
        if t > 0: mfma(vr(Y,4), vr(AB[t-1],4), woslot(t-1), vr(Y,4))
    mfma(vr(Y,4), vr(AB[7],4), woslot(7), vr(Y,4))
    def y_store():
        P.vm(f"buffer_store_dwordx4 {vr(Y,4)}, v{vDy}, {sr(rWS,4)}, s{sYown} offen {sfl}", counted=False)
    wg_reduce(Y, L_Y, "yred", y_store)
    stamp("Ypub")
    I(f"s_cmp_lg_u32 s{sW}, 1"); I("s_cbranch_scc1 L_fin"); I(f"s_cmp_ge_u32 s{sR}, 9"); I("s_cbranch_scc1 L_fin")
    P.region = "cons"
    I(f"s_mov_b32 s{sCnt}, {SPIN}")
    I("L_p2:")
    P.vm(f"buffer_load_dwordx4 {vr(G,4)}, v{vYg}, {sr(rWS,4)}, s{sYs} offen sc1")
    P.waitall()
    I(f"v_max3_u32 v{vT0}, v{G}, v{G+1}, v{G+2}"); I(f"v_max_u32 v{vT0}, v{vT0}, v{G+3}")
    I(f"v_cmp_eq_u32 vcc, -1, v{vT0}")
    I("s_cbranch_vccz L_g2")
    I(f"s_sub_u32 s{sCnt}, s{sCnt}, 1"); I(f"s_cmp_lg_u32 s{sCnt}, 0"); I("s_cbranch_scc1 L_p2")
    I("L_g2:")
    stamp("got2"); stamp("n2", f"s{sCnt}")
    scatter_reduce(G); rowred("v_add_f32", G, (8, 4, 2))
    I(f"v_add_f32 v{G}, v{G}, v{vXo}"); I(f"v_cvt_pk_bf16_f32 v{G}, v{G}, v{G}")
    P.vm(f"buffer_store_short v{G}, v{vOut}, {sr(rOUT,4)}, s{sC} offen")
    P.region = None
    I("L_fin:")
    if stamps:
        stamp("fin")
        I(f"v_writelane_b32 v{vStamp}, s{sXcc}, 31")
        I(f"s_lshr_b32 s{sT0}, s{sQGU}, 2"); I(f"s_add_u32 s{sT0}, s{sT0}, {WS_STAMP}")
        I(f"v_lshlrev_b32 v{vT1}, 2, v{vLane}"); lo32()
        P.vm(f"buffer_store_dword v{vStamp}, v{vT1}, {sr(rWS,4)}, s{sT0} offen")
    if calib:
        I("L_cal:"); I("s_memrealtime s[96:97]"); I("s_waitcnt lgkmcnt(0)"); I("s_sub_u32 s96, s96, s98")
        I(f"s_cmp_lt_u32 s96, {calib*100}"); I("s_cbranch_scc1 L_cal")
    I("s_endpgm")
    for lab, back, body in retry:
        I(f"{lab}:"); I("s_nop 7"); I(f"s_mov_b32 s{sT2}, {SPIN}"); I(f"{lab}_l:")
        for x in body: I(x)
        I(f"s_sub_u32 s{sT2}, s{sT2}, 1"); I(f"s_cmp_lg_u32 s{sT2}, 0"); I(f"s_cbranch_scc1 {lab}_l"); I(f"s_branch {back}")
    I("L_end:"); I("s_endpgm")

    head = open("cdna_kernels/" + NAME + ".s.ref").read().split("\n")
    head = [l for l in head if l.startswith(";") and "@launch" not in l and "Override launch" not in l and "grid=ceil" not in l]
    if stamps: head.append("; stamps: " + " ".join(snames))
    out = head + [f"; @launch grid=(256,1,1) block=(256,1,1) lds={L_END}",
                  '.amdgcn_target "amdgcn-amd-amdhsa--gfx950"', ".text", f".globl {KN}", ".p2align 8", f".type {KN},@function", f"{KN}:"]
    tail = ['.section .rodata,"a"', ".p2align 6", f".amdhsa_kernel {KN}", "  .amdhsa_next_free_vgpr 512", "  .amdhsa_next_free_sgpr 102",
            "  .amdhsa_accum_offset 256", "  .amdhsa_group_segment_fixed_size 0", "  .amdhsa_kernarg_size 96", "  .amdhsa_user_sgpr_count 2",
            "  .amdhsa_user_sgpr_kernarg_segment_ptr 1", "  .amdhsa_system_sgpr_workgroup_id_x 1", "  .amdhsa_float_denorm_mode_32 3", ".end_amdhsa_kernel"]
    return "\n".join(out) + "\n" + P.text() + "\n".join(tail) + "\n"

if __name__ == "__main__":
    for spec in sys.argv[1:]:
        name, _, kv = spec.partition(":")
        d = {}
        for p in kv.split(","):
            if not p: continue
            k, v = p.split("=")
            d[k] = int(v) if v.lstrip("-").isdigit() else v.replace("_", " ")
        open(name, "w").write(gen(**d))
```

```python
import struct, sys
from asmlib import Prog
NAME = "parallel_sum__mha_block_cached__glu_gated_reglu__decode"
KN = NAME + "_kernel"

OOB = 0x40000000
WS_QGU, WS_O, WS_Y, WS_STAT, WS_STAMP = 0, 0x80000, 0x100000, 0x180000, 0x200000
YSLOT = 384
L_STAT, L_O, L_Y, L_END = 0, 256, 2560, 4608
SPIN = 400000
FAR = "sc0 sc1"

HEADER = """\
;
; Phases:
; 0xffffffff by their writer, before it counts itself in.  Nothing found in ws on entry is ever used.
"""

def f32(x): return '0x%08x' % struct.unpack('<I', struct.pack('<f', x))[0]

def gen(D=12, gap1=18, cgap=4, qk_rate=6, sbar=3, wd_at=24, st_at=36, rot=57, stamps=0, wo_wait=8):
    P = Prog(); I = P.I
    def C(text): I("; " + text)
    nv = [1]
    def V(n=1, al=1):
        a = (nv[0] + al - 1) // al * al; nv[0] = a + n; return a
    vLane, vG, vI, vT0, vT1, vT2, vT3 = (V() for _ in range(7))
    vK, vV, vW, vD, vDq, vDy, vDw, vClr, vOut, vYg, vOg, vXoff = (V() for _ in range(12))
    vMx, vL, vF, vXo, vPf, vStamp, vSl, vSpare = (V() for _ in range(8))
    vTA = V(2, 2); vP2 = V(2, 2); vP3 = V(2, 2)
    vST = V(4, 4); SG = V(4, 4)
    M = V(4, 4); S = V(16, 4); Bq = V(16, 4)
    QK = [V(4, 4), V(4, 4)]; PV = V(4, 4); Y = V(4, 4); TACC = V(4, 4)
    AA = [V(4, 4), V(4, 4)]
    CLR = V(4, 4)
    X = V(18, 2); F = V(20, 4); RAW = V(12, 4)
    TB = V(72, 4)
    G = F; H = X; HO = H + 2
    assert nv[0] <= 256
    def vr(a, n): return f"v[{a}:{a+n-1}]"
    def ar(a, n): return f"a[{a}:{a+n-1}]"
    def sr(a, n=2): return f"s[{a}:{a+n-1}]"
    sX, sKp, sVp, sWq, sWo, sWg, sWu, sWd, sOut, sDbg, sWs = 4, 6, 8, 10, 12, 16, 18, 20, 22, 24, 26
    rK, rV, rX, rWO, rWD, rWS, rOUT, rDBG = 28, 32, 36, 40, 44, 48, 52, 56
    sPC = 60; sR, sS, sW, sU = 62, 63, 64, 65
    sA, sB, sStr = 66, 68, 70
    sT0, sT1, sT2, sT3, sSo, sCnt = 72, 73, 74, 75, 76, 77
    sQGU, sOown, sOh, sYown, sYs, sStOwn, sStH, sC = 78, 79, 80, 81, 82, 83, 84, 85
    sEx = 86; sXcc, sLoc, sClr, sFlag, sOg, sOne, sRd, sFlagQ, sSig = 88, 89, 90, 91, 92, 93, 96, 97, 14
    snames = []
    def stamp(name, sreg=None):
        if not stamps or (stamps == 3 and name not in ("entry", "pv", "fin")): return
        if sreg is None: I("s_memrealtime s[100:101]"); I("s_waitcnt lgkmcnt(0)"); sreg = "s100"
        I(f"v_writelane_b32 v{vStamp}, {sreg}, {len(snames)}"); snames.append(name)
    DPPF = "row_mask:0xf bank_mask:0xf"
    def lo32(): I("s_mov_b32 exec_hi, 0")
    def full(): I("s_mov_b64 exec, -1")
    def rne(dst, src):
        I(f"v_cvt_pk_bf16_f32 v{dst}, v{src}, v{src}"); I(f"v_and_b32 v{dst}, 0xffff0000, v{dst}")
    def rowred(op, v, steps):
        for s_ in steps: I(f"{op}_dpp v{v}, v{v}, v{v} row_ror:{s_} {DPPF}")
    def cross(op, v, t, which=(16, 32)):
        for x in which:
            I(f"v_mov_b32 v{t}, v{v}"); I(f"v_permlane{x}_swap_b32 v{t}, v{v}"); I(f"{op} v{v}, v{t}, v{v}")
    def build_a(a, src, lane):
        for w in range(4): I(f"v_and_b32_dpp v{a+w}, v{src}, v{M+w} row_newbcast:{lane} {DPPF}")
    def mfma(d, a, b, c): I(f"v_mfma_f32_16x16x32_bf16 {d}, {a}, {b}, {c}")
    def scatter_reduce(g):
        I(f"v_permlane32_swap_b32 v{g}, v{g+2}"); I(f"v_permlane32_swap_b32 v{g+1}, v{g+3}")
        I(f"v_add_f32 v{g}, v{g}, v{g+2}"); I(f"v_add_f32 v{g+1}, v{g+1}, v{g+3}")
        I(f"v_permlane16_swap_b32 v{g}, v{g+1}"); I(f"v_add_f32 v{g}, v{g}, v{g+1}")
    def sel(dst, lim, src, val):
        I(f"v_cmp_gt_u32 vcc, {lim}, v{src}"); I(f"v_cndmask_b32 v{dst}, v{vT3}, v{val}, vcc")

    I("s_cmp_ge_u32 s2, 256"); I("s_cbranch_scc1 L_end")
    I("s_load_dwordx16 s[4:19], s[0:1], 0"); I("s_load_dwordx8 s[20:27], s[0:1], 64")
    I(f"s_getpc_b64 {sr(sPC)}"); I("L_pc:")
    if stamps: I("s_memrealtime s[100:101]"); I(f"v_mov_b32 v{vStamp}, 0")
    I(f"v_lshrrev_b32 v{vT0}, 6, v0"); I(f"v_and_b32 v{vLane}, 63, v0")
    I(f"s_lshr_b32 s{sU}, s2, 3")
    I(f"v_readfirstlane_b32 s{sW}, v{vT0}")
    C("each wave pulls 128 bytes of this code into L2")
    I(f"v_lshl_add_u32 v{vT1}, s{sU}, 2, v{vT0}")
    I(f"v_lshlrev_b32 v{vT1}, 7, v{vT1}")
    I(f"v_and_b32 v{vT2}, 1, v{vLane}"); I(f"v_lshl_add_u32 v{vT1}, v{vT2}, 6, v{vT1}")
    I(f"v_min_u32 v{vT1}, L_end-L_pc, v{vT1}")
    I("s_mov_b64 exec, 3")
    P.vm(f"global_load_dword v{vPf}, v{vT1}, {sr(sPC)}")
    full()
    I(f"s_and_b32 s{sR}, s2, 7"); I(f"s_lshl_b32 s{sR}, s{sR}, 2")
    I(f"s_lshr_b32 s{sT0}, s2, 6"); I(f"s_and_b32 s{sS}, s{sU}, 7"); I(f"s_add_u32 s{sR}, s{sR}, s{sT0}")
    I(f"v_lshrrev_b32 v{vG}, 4, v{vLane}"); I(f"v_and_b32 v{vI}, 15, v{vLane}")
    C("lane (g,i) holds x[144g + 18((i+s)&7) ..+18); rows of this workgroup's weight tile: 144g + 18s + t")
    I(f"v_add_u32 v{vT0}, s{sS}, v{vI}"); I(f"v_and_b32 v{vT0}, 7, v{vT0}"); I(f"v_mul_u32_u24 v{vT0}, 36, v{vT0}")
    I(f"v_mul_u32_u24 v{vXoff}, 288, v{vG}"); I(f"v_add_u32 v{vXoff}, v{vXoff}, v{vT0}")
    C("wave 0: Wq, 1: Wgate, 2: Wup (128 columns each), 3: the last 16 columns of gate and up; sRd = head the tile belongs to")
    I(f"s_cmp_eq_u32 s{sW}, 0"); I(f"s_movk_i32 s{sStr}, 0x2400"); I(f"s_cselect_b32 s{sStr}, 0x2000, s{sStr}"); I(f"s_mov_b32 s{sStr+1}, 0")
    I(f"s_lshl_b32 s{sT0}, s{sW}, 1"); I(f"s_lshr_b32 s{sT0}, {rot}, s{sT0}"); I(f"s_add_u32 s{sT0}, s{sT0}, s{sR}"); I(f"s_and_b32 s{sT0}, s{sT0}, 3")
    I(f"s_andn2_b32 s{sRd}, s{sR}, 3"); I(f"s_or_b32 s{sRd}, s{sRd}, s{sT0}")
    I(f"s_lshl_b32 s{sT2}, s{sRd}, 8"); I(f"s_lshl_b32 s{sT3}, s{sRd}, 5"); I(f"s_addk_i32 s{sT3}, 0x2000")
    I(f"s_cmp_eq_u32 s{sW}, 3"); I(f"s_cselect_b32 s{sT2}, s{sT3}, s{sT2}"); I(f"s_cselect_b32 s{sT1}, 1, 15")
    I(f"s_mul_i32 s{sT0}, s{sS}, 18")
    I(f"v_mul_u32_u24 v{vT0}, 144, v{vG}"); I(f"v_add_u32 v{vT0}, s{sT0}, v{vT0}")
    I(f"v_mul_u32_u24 v{vT0}, s{sStr}, v{vT0}")
    I(f"v_and_b32 v{vT1}, s{sT1}, v{vI}"); I(f"v_lshl_add_u32 v{vT0}, v{vT1}, 4, v{vT0}"); I(f"v_add_u32 v{vP2}, s{sT2}, v{vT0}")
    I(f"v_mov_b32 v{vP2+1}, 0")
    I(f"v_and_b32 v{vT1}, 2, v{vI}"); I(f"v_cmp_ne_u32 vcc, 0, v{vT1}")
    I(f"s_mov_b32 s{rX+2}, 1152"); I(f"s_mov_b32 s{rX+3}, 0x20000")
    I("s_waitcnt lgkmcnt(0)")
    I(f"s_mov_b32 s{rX}, s{sX}"); I(f"s_mov_b32 s{rX+1}, s{sX+1}")
    xl = [P.vm(f"buffer_load_dwordx4 {vr(RAW,4)}, v{vXoff}, {sr(rX,4)}, 0 offen"),
          P.vm(f"buffer_load_dwordx4 {vr(RAW+4,4)}, v{vXoff}, {sr(rX,4)}, 0 offen offset:16"),
          P.vm(f"buffer_load_dword v{RAW+8}, v{vXoff}, {sr(rX,4)}, 0 offen offset:32")]
    I(f"s_cmp_eq_u32 s{sW}, 0"); I(f"s_cselect_b64 {sr(sA)}, {sr(sWq)}, {sr(sWg)}")
    I(f"s_cmp_eq_u32 s{sW}, 2"); I(f"s_cselect_b64 {sr(sA)}, {sr(sWu)}, {sr(sA)}")
    I(f"s_cmp_eq_u32 s{sW}, 3"); I(f"s_cselect_b64 {sr(sB)}, {sr(sWu)}, {sr(sA)}")
    I(f"v_mov_b32 v{vT0}, s{sA}"); I(f"v_mov_b32 v{vT1}, s{sA+1}"); I(f"v_mov_b32 v{vT2}, s{sB}"); I(f"v_mov_b32 v{vT3}, s{sB+1}")
    I(f"v_cndmask_b32 v{vTA}, v{vT0}, v{vT2}, vcc"); I(f"v_cndmask_b32 v{vTA+1}, v{vT1}, v{vT3}, vcc")
    I(f"v_lshl_add_u64 {vr(vTA,2)}, {vr(vTA,2)}, 0, {vr(vP2,2)}")
    tl, kl, vl, wdl, wol = [], [], [], [], []
    def tile_load():
        t = len(tl)
        tl.append(P.vm(f"global_load_dwordx4 {vr(TB+4*t,4)}, {vr(vTA,2)}, off nt"))
        if t < 17: I(f"v_lshl_add_u64 {vr(vTA,2)}, {vr(vTA,2)}, 0, {sr(sStr)}")
    def kv_load(lst, srd, base, dst):
        n = len(lst); assert n < 64
        I(f"s_mov_b32 s{sSo}, {n * 4096}")
        lst.append(P.vm(f"buffer_load_dwordx4 {dst}, v{base}, {sr(srd,4)}, s{sSo} offen offset:0 nt"))
    def k_load(): kv_load(kl, rK, vK, ar(4*len(kl), 4))
    while P.nvm < D - 1: tile_load()

    C("descriptors, workspace offsets, lane offsets")
    for r_, p_, n_ in ((rWS, sWs, 0x1000000), (rOUT, sOut, 1152), (rDBG, sDbg, 256)):
        I(f"s_mov_b32 s{r_}, s{p_}"); I(f"s_mov_b32 s{r_+1}, s{p_+1}"); I(f"s_mov_b32 s{r_+2}, {n_}"); I(f"s_mov_b32 s{r_+3}, 0x20000")
    I(f"s_lshl_b32 s{sT0}, s{sR}, 3"); I(f"s_add_u32 s{sT0}, s{sT0}, s{sS}")
    I(f"s_lshl_b32 s{sOown}, s{sT0}, 9"); I(f"s_add_u32 s{sOown}, s{sOown}, {WS_O}")
    I(f"s_lshl_b32 s{sStOwn}, s{sT0}, 7"); I(f"s_add_u32 s{sStOwn}, s{sStOwn}, {WS_STAT}")
    I(f"s_lshl_b32 s{sQGU}, s{sRd}, 3"); I(f"s_add_u32 s{sQGU}, s{sQGU}, s{sS}")
    I(f"s_lshl_b32 s{sQGU}, s{sQGU}, 11"); I(f"s_lshl_b32 s{sT1}, s{sW}, 9"); I(f"s_add_u32 s{sQGU}, s{sQGU}, s{sT1}")
    I(f"s_mul_i32 s{sYs}, s{sS}, {32*YSLOT}"); I(f"s_add_u32 s{sYs}, s{sYs}, {WS_Y}")
    I(f"s_mul_i32 s{sT1}, s{sR}, {YSLOT}"); I(f"s_add_u32 s{sYown}, s{sYs}, s{sT1}")
    I(f"s_cmp_eq_u32 s{sW}, 1"); I(f"s_cselect_b32 s{sClr}, s{sYown}, s{sOown}"); I(f"s_cselect_b32 s{sT1}, 24, 32")
    I(f"s_cmp_eq_u32 s{sW}, 2"); I(f"s_cselect_b32 s{sClr}, s{sStOwn}, s{sClr}"); I(f"s_cselect_b32 s{sT1}, 8, s{sT1}")
    I(f"s_cmp_eq_u32 s{sW}, 3"); I(f"s_cselect_b32 s{sT1}, 0, s{sT1}"); I(f"s_cselect_b32 s{sT2}, 4, 16")
    I(f"v_mov_b32 v{vT3}, {OOB}")
    I(f"v_lshlrev_b32 v{vV}, 4, v{vLane}")
    sel(vClr, f"s{sT1}", vLane, vV)
    for w in range(4): I(f"v_mov_b32 v{CLR+w}, -1")
    C("wave 1 marks the Y slot empty now (read by other dies); waves 0 and 2 mark the O and stat slots later")
    I(f"s_cmp_eq_u32 s{sW}, 1"); I(f"s_cselect_b32 s{sT3}, 24, 0"); sel(vSl, f"s{sT3}", vLane, vV)
    P.vm(f"buffer_store_dwordx4 {vr(CLR,4)}, v{vSl}, {sr(rWS,4)}, s{sClr} offen {FAR}")
    I(f"s_cselect_b32 s{sT1}, 0, s{sT1}"); sel(vClr, f"s{sT1}", vLane, vV)
    I(f"v_lshlrev_b32 v{vT0}, 5, v{vI}"); I(f"v_lshl_add_u32 v{vT0}, v{vG}, 4, v{vT0}")
    I(f"s_lshl_b32 s{sT1}, s{sW}, 9"); I(f"v_add_u32 v{vDw}, s{sT1}, v{vT0}")
    sel(vD, 32, vLane, vT0); sel(vDq, f"s{sT2}", vI, vD); sel(vDy, 12, vI, vD)
    C("K and V: the four waves read consecutive 1 KB pieces of the workgroup's 256 KB")
    I(f"s_lshl_b32 s{sT0}, s{sR}, 21"); I(f"s_lshl_b32 s{sT1}, s{sS}, 18"); I(f"s_add_u32 s{sT0}, s{sT0}, s{sT1}")
    I(f"s_mul_i32 s{sT1}, s{sW}, 1024"); I(f"s_add_u32 s{sT0}, s{sT0}, s{sT1}")
    for r_, p_ in ((rK, sKp), (rV, sVp)):
        I(f"s_add_u32 s{r_}, s{p_}, s{sT0}"); I(f"s_addc_u32 s{r_+1}, s{p_+1}, 0")
        I(f"s_mov_b32 s{r_+2}, {(256<<10) - 3*1024}"); I(f"s_mov_b32 s{r_+3}, 0x20000")
    I(f"v_and_b32 v{vT0}, 3, v{vI}"); I(f"v_lshrrev_b32 v{vT1}, 2, v{vI}")
    I(f"v_lshlrev_b32 v{vK}, 8, v{vT1}"); I(f"v_lshl_add_u32 v{vK}, v{vG}, 6, v{vK}"); I(f"v_lshl_add_u32 v{vK}, v{vT0}, 4, v{vK}")
    I(f"s_mul_i32 s{sT0}, s{sS}, 144")
    for r_, p_, n_ in ((rWO, sWo, 4096*1152), (rWD, sWd, 4608*1152)):
        I(f"s_add_u32 s{r_}, s{p_}, s{sT0}"); I(f"s_addc_u32 s{r_+1}, s{p_+1}, 0")
        I(f"s_sub_u32 s{r_+2}, {n_}, s{sT0}"); I(f"s_mov_b32 s{r_+3}, 0x20000")
    I(f"s_lshl_b32 s{sStH}, s{sR}, 10"); I(f"s_add_u32 s{sStH}, s{sStH}, {WS_STAT}")
    I(f"s_lshl_b32 s{sT1}, s{sW}, 7")
    I(f"s_lshl_b32 s{sOh}, s{sR}, 14"); I(f"s_add_u32 s{sOh}, s{sOh}, s{sT1}")
    I(f"s_lshl_b32 s{sOg}, s{sR}, 12"); I(f"s_add_u32 s{sOg}, s{sOg}, s{sT1}"); I(f"s_add_u32 s{sOg}, s{sOg}, {WS_O}")
    I(f"s_lshl_b32 s{sT1}, s{sR}, 5"); I(f"s_add_u32 s{sYs}, s{sYs}, s{sT1}")
    I(f"s_mul_i32 s{sC}, s{sS}, 144"); I(f"s_lshl_b32 s{sT1}, s{sR}, 4"); I(f"s_add_u32 s{sC}, s{sC}, s{sT1}")
    C("counter increment: 1 + (die << 10) + (die^2 << 20); eight equal dies sum to exactly 8x one increment")
    I(f"s_getreg_b32 s{sXcc}, hwreg(HW_REG_XCC_ID, 0, 4)")
    I(f"s_mul_i32 s{sSig}, s{sXcc}, s{sXcc}"); I(f"s_lshl_b32 s{sSig}, s{sSig}, 10"); I(f"s_add_u32 s{sSig}, s{sSig}, s{sXcc}")
    I(f"s_lshl_b32 s{sSig}, s{sSig}, 10"); I(f"s_add_u32 s{sSig}, s{sSig}, 1")
    I(f"v_lshlrev_b32 v{vT0}, 4, v{vI}"); I(f"v_mad_u32_u24 v{vT0}, v{vG}, s{rX+2}, v{vT0}"); sel(vW, 9, vI, vT0)
    I(f"v_lshlrev_b32 v{vT0}, 1, v{vG}"); I(f"v_lshl_add_u32 v{vT0}, v{vI}, 3, v{vT0}"); sel(vOut, 2, vI, vT0)
    I(f"v_lshrrev_b32 v{vT0}, 1, v{vLane}"); I(f"v_mul_u32_u24 v{vT0}, {YSLOT}, v{vT0}"); I(f"v_and_b32 v{vT1}, 1, v{vLane}"); I(f"v_lshl_add_u32 v{vYg}, v{vT1}, 4, v{vT0}")
    I(f"v_lshrrev_b32 v{vT0}, 3, v{vLane}"); I(f"v_and_b32 v{vT1}, 7, v{vLane}"); I(f"v_lshlrev_b32 v{vT1}, 4, v{vT1}")
    I(f"v_lshl_add_u32 v{vOg}, v{vT0}, 9, v{vT1}")
    I(f"v_lshlrev_b32 v{vT0}, 4, v{vLane}"); I(f"s_lshl_b32 s{sT1}, s{sW}, 4"); I(f"v_add_u32 v{vSl}, s{sT1}, v{vT0}")
    C("diagonal masks: lane i < 8 keeps bf16 element i of its eight")
    I(f"v_and_b32 v{vT0}, 1, v{vI}"); I(f"v_lshlrev_b32 v{vT0}, 4, v{vT0}"); I(f"v_mov_b32 v{vT1}, 0xffff"); I(f"v_lshlrev_b32 v{vT0}, v{vT0}, v{vT1}")
    I(f"v_lshrrev_b32 v{vT1}, 1, v{vI}")
    for w in range(4):
        I(f"v_cmp_eq_u32 vcc, {w}, v{vT1}"); I(f"v_cndmask_b32 v{M+w}, 0, v{vT0}, vcc")
    I(f"v_mov_b32 v{vST+2}, s{sXcc}"); I(f"v_mov_b32 v{vST+3}, s{sXcc}")
    if stamps: stamp("entry", "s100")

    C("---- layer norm (every x element is held by two lanes) ----")
    def ln_issue(n):
        for _ in range(n): P.pace(D); tile_load()
    P.wait(xl[2])
    stamp("x")
    for d in range(9):
        I(f"v_lshlrev_b32 v{F+2*d}, 16, v{RAW+d}"); I(f"v_and_b32 v{F+2*d+1}, 0xffff0000, v{RAW+d}")
    I(f"v_pk_add_f32 {vr(vP3,2)}, {vr(F,2)}, {vr(F+2,2)}")
    for d in range(2, 9): I(f"v_pk_add_f32 {vr(vP3,2)}, {vr(vP3,2)}, {vr(F+2*d,2)}")
    I(f"v_add_f32 v{vT0}, v{vP3}, v{vP3+1}")
    rowred("v_add_f32", vT0, (8, 4, 2, 1)); cross("v_add_f32", vT0, vT1)
    I(f"v_mul_f32 v{vP2}, {f32(1.0/1152)}, v{vT0}"); I(f"v_mov_b32 v{vP2+1}, v{vP2}")
    for d in range(9):
        I(f"v_pk_add_f32 {vr(X+2*d,2)}, {vr(F+2*d,2)}, {vr(vP2,2)} neg_lo:[0,1] neg_hi:[0,1]")
    I(f"v_pk_mul_f32 {vr(vP3,2)}, {vr(X,2)}, {vr(X,2)}")
    for d in range(1, 9): I(f"v_pk_fma_f32 {vr(vP3,2)}, {vr(X+2*d,2)}, {vr(X+2*d,2)}, {vr(vP3,2)}")
    I(f"v_add_f32 v{vT0}, v{vP3}, v{vP3+1}")
    ln_issue(2)
    rowred("v_add_f32", vT0, (8, 4, 2, 1)); cross("v_add_f32", vT0, vT1)
    I(f"v_mul_f32 v{vT0}, {f32(1.0/1152)}, v{vT0}")
    rne(vT0, vT0); I(f"v_add_f32 v{vT0}, {f32(1e-5)}, v{vT0}"); rne(vT0, vT0)
    I(f"v_sqrt_f32 v{vT0}, v{vT0}"); rne(vT0, vT0); I(f"v_rcp_f32 v{vP3}, v{vT0}")
    rne(vP2, vP2); I(f"v_mov_b32 v{vP2+1}, v{vP2}"); I(f"v_mov_b32 v{vP3+1}, v{vP3}")
    for d in range(9):
        I(f"v_pk_add_f32 {vr(F+2*d,2)}, {vr(F+2*d,2)}, {vr(vP2,2)} neg_lo:[0,1] neg_hi:[0,1]")
    for d in range(9): I(f"v_cvt_pk_bf16_f32 v{RAW+d}, v{F+2*d}, v{F+2*d+1}")
    ln_issue(2)
    for d in range(9):
        I(f"v_lshlrev_b32 v{F+2*d}, 16, v{RAW+d}"); I(f"v_and_b32 v{F+2*d+1}, 0xffff0000, v{RAW+d}")
    for d in range(9): I(f"v_pk_mul_f32 {vr(F+2*d,2)}, {vr(F+2*d,2)}, {vr(vP3,2)}")
    for t in range(18): I(f"v_cvt_pk_bf16_f32 v{X+t}, v{F+t}, v{F+t}")
    stamp("LN")

    qk_done = [0]
    def vslot(n): return vr(TB + 4*n, 4) if n < 16 else ar(4*(n-16), 4)
    def v_load(): kv_load(vl, rV, vV, vslot(len(vl)))
    def kv_next():
        P.pace(D)
        if len(kl) < 64: k_load()
        else:
            assert len(vl) < 16 or qk_done[0] > len(vl) - 16
            v_load()
    def store2(txt, tag):
        reg = P.region
        I(f"s_cmp_eq_u32 s{sLoc}, 0"); I(f"s_cbranch_scc1 L_far{tag}")
        P.region = "n" + tag; I(txt); I(f"s_branch L_st{tag}"); P.region = reg
        I(f"L_far{tag}:"); P.vm(f"{txt} {FAR}", False); I(f"L_st{tag}:")
    def wdslot(n): return ar(4*(48+n), 4)
    def woslot(n): return vr(TB+4*n, 4)
    def proj_row(t):
        if t < 8: I(f"s_lshl_b32 s{sT0}, s{sR}, 7"); I(f"s_lshl_b32 s{sT1}, s{sW}, 5"); I(f"s_addk_i32 s{sT1}, {4*t}")
        else:     I(f"s_lshl_b32 s{sT0}, s{sR}, 4"); I(f"s_lshl_b32 s{sT1}, s{sW}, 2"); I(f"s_addk_i32 s{sT1}, 4096")
        I(f"s_add_u32 s{sT0}, s{sT0}, s{sT1}"); I(f"s_mul_i32 s{sT0}, s{sT0}, 1152")
    def wd_load():
        t = len(wdl); proj_row(t)
        wdl.append(P.vm(f"buffer_load_dwordx4 {wdslot(t)}, v{vW}, {sr(rWD,4)}, s{sT0} offen nt"))
    def wo_load():
        t = len(wol); proj_row(t)
        wol.append(P.vm(f"buffer_load_dwordx4 {woslot(t)}, v{vW}, {sr(rWO,4)}, s{sT0} offen nt"))

    C("---- weight tile: partial q / gate / up; K loads follow ----")
    for t in range(18):
        P.pace(D)
        if len(tl) < 18: tile_load()
        else: k_load()
        build_a(AA[t % 2], X + t, 0)
        P.wait(tl[t])
        mfma(vr(TACC,4), vr(AA[t%2],4), vr(TB+4*t,4), "0" if t == 0 else vr(TACC,4))
    stamp("tile")
    clr_txt = f"buffer_store_dwordx4 {vr(CLR,4)}, v{vClr}, {sr(rWS,4)}, s{sClr} offen"
    part_txt = f"buffer_store_dwordx4 {vr(TACC,4)}, v{vDq}, {sr(rWS,4)}, s{sQGU} offen"
    P.vm(clr_txt)
    last_store = P.vm(part_txt)
    while not P.isdone(last_store): kv_next()
    C("all four waves' stores are in L2: count this workgroup in")
    I("s_barrier")
    I(f"s_lshl_b32 s{sFlag}, s{sR}, 3")
    I(f"s_andn2_b32 s{sFlagQ}, s{sFlag}, 31")
    I(f"s_cmp_lg_u32 s{sW}, 0"); I("s_cbranch_scc1 L_noflag")
    P.region = "flag"
    I(f"s_mov_b32 s{sOne}, s{sSig}"); I(f"s_atomic_add s{sOne}, {sr(sDbg)}, s{sFlag}")
    P.region = None
    I("L_noflag:")
    stamp("flag")
    for _ in range(gap1): kv_next()
    C("the four counters of this group: complete and all on this die, or the slow path")
    I(f"s_lshl_b32 s{sSig}, s{sSig}, 3"); I(f"s_mov_b32 s{sLoc}, 1")
    I(f"s_load_dwordx8 s[4:11], {sr(sDbg)}, s{sFlagQ}")
    for _ in range(cgap): kv_next()
    I("s_waitcnt lgkmcnt(0)")
    for k in (4, 6, 8, 10): I(f"s_xor_b32 s{k}, s{k}, s{sSig}")
    I("s_or_b32 s4, s4, s6"); I("s_or_b32 s8, s8, s10"); I("s_or_b32 s4, s4, s8")
    I("s_cbranch_scc1 L_r1")
    I("L_c1:")
    C("---- q: sum of eight partials, rounded to bf16, one column block per B operand ----")
    I(f"v_lshrrev_b32 v{vT0}, 2, v{vI}"); I(f"v_lshlrev_b32 v{vT0}, 12, v{vT0}")
    I(f"v_and_b32 v{vT1}, 3, v{vI}"); I(f"v_lshl_add_u32 v{vT0}, v{vT1}, 5, v{vT0}"); I(f"v_lshl_add_u32 v{vT0}, v{vG}, 7, v{vT0}")
    I(f"s_lshl_b32 s{sT0}, s{sR}, 14")
    ql = [P.vm(f"buffer_load_dwordx4 {vr(G+4*n,4)}, v{vT0}, {sr(rWS,4)}, s{sT0} offen offset:{(n//2)*2048 + (n%2)*16} sc1") for n in range(4)]
    while not P.isdone(ql[3]): kv_next()
    stamp("q")
    for k in range(0, 8, 2): I(f"v_pk_add_f32 {vr(G+k,2)}, {vr(G+k,2)}, {vr(G+8+k,2)}")
    for st in (4, 8):
        for k in range(8): I(f"v_add_f32_dpp v{G+k}, v{G+k}, v{G+k} row_ror:{st} {DPPF}")
    for k in range(4): I(f"v_cvt_pk_bf16_f32 v{G+8+k}, v{G+2*k}, v{G+2*k+1}")
    I(f"v_lshrrev_b32 v{vT0}, 2, v{vI}")
    for t in range(4):
        I(f"v_cmp_eq_u32 vcc, {t}, v{vT0}")
        for k in range(4): I(f"v_cndmask_b32 v{Bq+4*t+k}, 0, v{G+8+k}, vcc")
    I(f"v_mov_b32 v{vMx}, 0xff800000")

    C("---- scores: 16 keys per four MFMAs, valid in lanes 0,4,8,12 of each row ----")
    def qk_finish(n):
        d = QK[n % 2]
        I(f"v_add_f32_dpp v{vT0}, v{d+1}, v{d} quad_perm:[1,1,1,1] {DPPF}")
        I(f"v_add_f32_dpp v{vT1}, v{d+3}, v{d+2} quad_perm:[3,3,3,3] {DPPF}")
        I(f"v_add_f32_dpp v{S+n}, v{vT1}, v{vT0} quad_perm:[2,2,2,2] {DPPF}")
        rne(S+n, S+n)
        I(f"v_mul_f32 v{S+n}, {f32(128**-0.5)}, v{S+n}")
        rne(S+n, S+n)
        I(f"v_max_f32 v{vMx}, v{vMx}, v{S+n}")
    def qk_step(limit):
        cnt = 0
        while cnt < limit and qk_done[0] < len(kl) and P.isdone(kl[qk_done[0]]):
            k = qk_done[0]; n, t = divmod(k, 4); d = QK[n % 2]
            mfma(vr(d,4), ar(4*k,4), vr(Bq+4*t,4), "0" if t == 0 else vr(d,4))
            if t == 3 and n > 0: qk_finish(n - 1)
            qk_done[0] += 1; cnt += 1
    while qk_done[0] < 64:
        qk_step(qk_rate)
        if qk_done[0] < 64: kv_next()
    qk_finish(15)
    stamp("qk")
    C("---- p = exp(s - wave max), wave sum; (max, sum) of the four waves go out as one line ----")
    rowred("v_max_f32", vMx, (8, 4)); cross("v_max_f32", vMx, vT1)
    I(f"v_mov_b32_dpp v{vST}, v{vMx} quad_perm:[0,0,0,0] {DPPF}")
    I(f"v_mul_f32 v{vT2}, 0xbfb8aa3b, v{vST}")
    I(f"s_mov_b32 s{sT3}, 0x3fb8aa3b")
    I(f"v_mov_b32 v{vL}, 0")
    for n in range(16):
        I(f"v_fma_f32 v{S+n}, v{S+n}, s{sT3}, v{vT2}"); I(f"v_exp_f32 v{S+n}, v{S+n}")
        if n % 4 == 3: P.pace(D); v_load()
    for n in range(16):
        I(f"v_add_f32 v{vL}, v{vL}, v{S+n}"); I(f"v_cvt_pk_bf16_f32 v{S+n}, v{S+n}, v{S+n}")
    rowred("v_add_f32", vL, (8, 4)); cross("v_add_f32", vL, vT1)
    I(f"v_mov_b32 v{vST+1}, v{vL}")
    I("s_mov_b64 exec, 0x11"); I(f"ds_write_b128 v{vSl}, {vr(vST,4)} offset:{L_STAT}"); full()
    stamp("soft")

    pv_done = [0]; a_built = [-1]
    def pv_build(k):
        if a_built[0] < k:
            n, t = divmod(k, 4); build_a(AA[k % 2], S + n, 4*t); a_built[0] = k
    def pv_step(limit):
        cnt = 0
        while cnt < limit and pv_done[0] < len(vl) and P.isdone(vl[pv_done[0]]):
            k = pv_done[0]; pv_build(k)
            mfma(vr(PV,4), vr(AA[k%2],4), vslot(k), "0" if k == 0 else vr(PV,4))
            pv_done[0] += 1; cnt += 1
            if k + 1 < 64: pv_build(k + 1)
    C("---- V stream ----")
    for _ in range(sbar): P.pace(D); v_load(); pv_step(6)
    I("s_waitcnt lgkmcnt(0)"); I("s_barrier")
    I(f"s_cmp_lg_u32 s{sW}, 0"); I("s_cbranch_scc1 L_nostat")
    P.region = "stat"
    I("s_mov_b64 exec, 0xff"); I(f"ds_read_b128 {vr(SG,4)}, v{vV} offset:{L_STAT}"); I("s_waitcnt lgkmcnt(0)")
    store2(f"buffer_store_dwordx4 {vr(SG,4)}, v{vV}, {sr(rWS,4)}, s{sStOwn} offen", "s"); full()
    P.region = None
    I("L_nostat:")

    def h_gather():
        C("gate / up partials for this wave's 32 + 4 W_down rows")
        I(f"v_lshrrev_b32 v{vT0}, 3, v{vLane}"); I(f"v_and_b32 v{vT1}, 7, v{vLane}"); I(f"v_lshlrev_b32 v{vT1}, 4, v{vT1}")
        I(f"v_lshl_add_u32 v{vT0}, v{vT0}, 11, v{vT1}")
        P.vm(f"buffer_load_dwordx4 {vr(G,4)}, v{vT0}, {sr(rWS,4)}, s{sOh} offen offset:512 sc1")
        P.vm(f"buffer_load_dwordx4 {vr(G+4,4)}, v{vT0}, {sr(rWS,4)}, s{sOh} offen offset:1024 sc1")
        I(f"v_and_b32 v{vT0}, 7, v{vI}"); I(f"v_lshlrev_b32 v{vT0}, 11, v{vT0}")
        I(f"v_lshrrev_b32 v{vT1}, 3, v{vI}"); I(f"v_lshl_add_u32 v{vT0}, v{vT1}, 6, v{vT0}"); I(f"v_lshl_add_u32 v{vT0}, v{vG}, 2, v{vT0}")
        I(f"s_lshl_b32 s{sT0}, s{sR}, 14"); I(f"s_lshl_b32 s{sT1}, s{sW}, 4"); I(f"s_add_u32 s{sT0}, s{sT0}, s{sT1}")
        return P.vm(f"buffer_load_dword v{G+8}, v{vT0}, {sr(rWS,4)}, s{sT0} offen offset:1536 sc1")
    def h_compute():
        C("h = bf16(relu(bf16 gate) * bf16 up)")
        for g in (G, G + 4):
            scatter_reduce(g); I(f"v_add_f32_dpp v{g}, v{g}, v{g} row_ror:8 {DPPF}"); rne(g, g)
        I(f"v_max_f32 v{G}, 0, v{G}"); I(f"v_mul_f32 v{G}, v{G}, v{G+4}"); I(f"v_cvt_pk_bf16_f32 v{H}, v{G}, v{G}")
        r = G + 8
        I(f"v_add_f32_dpp v{r}, v{r}, v{r} quad_perm:[1,0,3,2] {DPPF}"); I(f"v_add_f32_dpp v{r}, v{r}, v{r} quad_perm:[2,3,0,1] {DPPF}")
        I(f"v_add_f32_dpp v{r}, v{r}, v{r} row_half_mirror {DPPF}"); rne(r, r)
        I(f"v_max_f32 v{r+1}, 0, v{r}"); I(f"v_mul_f32_dpp v{r}, v{r}, v{r+1} row_ror:8 {DPPF}"); I(f"v_cvt_pk_bf16_f32 v{H+1}, v{r}, v{r}")
    AW = [RAW, RAW + 4]
    st_txt = [f"buffer_load_dwordx3 {vr(SG,3)}, v{vP2}, {sr(rWS,4)}, s{sStH} offen sc1",
              f"buffer_load_dword v{SG+3}, v{vP2+1}, {sr(rDBG,4)}, 0 offen sc1"]
    st_chk = [f"v_max3_u32 v{vP3}, v{SG}, v{SG+1}, v{SG+2}", f"v_cmp_eq_u32 vcc, -1, v{vP3}", f"v_and_b32 v{SG+3}, 0x3ff, v{SG+3}",
              f"v_cmp_gt_u32 {sr(sEx)}, 8, v{SG+3}", "s_nop 3", f"s_or_b64 vcc, vcc, {sr(sEx)}"]
    def f_compute():
        C("f = exp(wave max - head max) / head sum")
        a, b = SG, SG + 1
        I(f"v_mov_b32 v{vT0}, v{a}"); rowred("v_max_f32", vT0, (8, 4, 2, 1)); cross("v_max_f32", vT0, vT1, (16,))
        I(f"v_sub_f32 v{a}, v{a}, v{vT0}"); I(f"v_sub_f32 v{vF}, v{vST}, v{vT0}")
        I(f"v_mul_f32 v{a}, 0x3fb8aa3b, v{a}"); I(f"v_mul_f32 v{vF}, 0x3fb8aa3b, v{vF}")
        I(f"v_exp_f32 v{a}, v{a}"); I(f"v_exp_f32 v{vF}, v{vF}")
        I(f"v_mul_f32 v{a}, v{a}, v{b}"); rowred("v_add_f32", a, (8, 4, 2, 1)); cross("v_add_f32", a, vT1, (16,))
        I(f"v_rcp_f32 v{a}, v{a}"); I(f"v_mul_f32 v{vF}, v{vF}, v{a}")
    hl = stl = None; h_ready = wd_done = f_ready = False
    v0 = len(vl)
    while len(vl) < 64 or len(wol) < 8:
        P.pace(D)
        if hl is not None and len(wdl) < 9: wd_load()
        elif len(vl) == 64: wo_load()
        else: v_load()
        if hl is None and len(vl) >= max(wd_at, v0 + 1):
            hl = h_gather()
            P.vm(f"buffer_load_ushort v{vXo}, v{vOut}, {sr(rX,4)}, s{sC} offen")
        if hl is not None and not h_ready and P.isdone(hl): h_compute(); h_ready = True
        if h_ready and not wd_done and len(wdl) == 9 and P.isdone(wdl[8]):
            C("h . W_down tile")
            for t in range(9):
                build_a(AW[t % 2], H + (t // 8), t % 8)
                mfma(vr(Y,4), vr(AW[t%2],4), wdslot(t), "0" if t == 0 else vr(Y,4))
            wd_done = True
        if stl is None and len(vl) >= st_at:
            C("the head's 32 (max, sum) pairs, and all 32 counters (every Y slot has been marked empty)")
            I(f"v_and_b32 v{vT0}, 31, v{vLane}"); I(f"v_lshlrev_b32 v{vP2+1}, 3, v{vT0}")
            I(f"v_lshrrev_b32 v{vT1}, 2, v{vT0}"); I(f"v_and_b32 v{vT0}, 3, v{vT0}"); I(f"v_lshlrev_b32 v{vT0}, 4, v{vT0}"); I(f"v_lshl_add_u32 v{vP2}, v{vT1}, 7, v{vT0}")
            stl = [P.vm(x) for x in st_txt]
        if stl is not None and not f_ready and P.isdone(stl[1]):
            I("\n".join(st_chk)); I("s_cbranch_vccnz L_r2"); I("L_c2:")
            f_compute(); f_ready = True
            I(f"v_lshlrev_b32 v{vXo}, 16, v{vXo}")
        pv_step(6)
    assert wd_done and f_ready
    stamp("wo_iss")

    C("---- tail ----")
    while pv_done[0] < 64:
        pv_build(pv_done[0]); P.wait(vl[pv_done[0]]); pv_step(1)
    for k in range(4): I(f"v_mul_f32 v{PV+k}, v{vF}, v{PV+k}")
    def wg_reduce(acc, lbase, tag, store):
        lo32(); I(f"ds_write_b128 v{vDw}, {vr(acc,4)} offset:{lbase}"); full()
        I("s_waitcnt lgkmcnt(0)"); I("s_barrier")
        I(f"s_cmp_lg_u32 s{sW}, 0"); I(f"s_cbranch_scc1 L_{tag}")
        P.region = tag
        lo32()
        for k in range(3): I(f"ds_read_b128 {vr(G+4*k,4)}, v{vDw} offset:{lbase + 512*(k+1)}")
        I("s_waitcnt lgkmcnt(2)")
        for k in (0, 2): I(f"v_pk_add_f32 {vr(acc+k,2)}, {vr(acc+k,2)}, {vr(G+k,2)}")
        I("s_waitcnt lgkmcnt(0)")
        for k in (0, 2): I(f"v_pk_add_f32 {vr(G+4+k,2)}, {vr(G+4+k,2)}, {vr(G+8+k,2)}")
        for k in (0, 2): I(f"v_pk_add_f32 {vr(acc+k,2)}, {vr(acc+k,2)}, {vr(G+4+k,2)}")
        full()
        store()
        P.region = None
        I(f"L_{tag}:")
    def poll(tag, txt):
        I(f"s_mov_b32 s{sCnt}, {SPIN}")
        I(f"L_p{tag}:")
        P.vm(txt); P.waitall()
        I(f"v_max3_u32 v{vT0}, v{G}, v{G+1}, v{G+2}"); I(f"v_max_u32 v{vT0}, v{vT0}, v{G+3}"); I(f"v_cmp_eq_u32 vcc, -1, v{vT0}")
        I(f"s_cbranch_vccz L_g{tag}")
        reg = P.region; P.region = "p" + tag
        I(f"s_sub_u32 s{sCnt}, s{sCnt}, 1"); I(f"s_cmp_lg_u32 s{sCnt}, 0"); I(f"s_cbranch_scc1 L_p{tag}")
        P.region = reg
        I(f"L_g{tag}:")
    stamp("pv")
    C("normalised o of this workgroup: four waves summed through LDS, published by wave 0")
    wg_reduce(PV, L_O, "ored", lambda: store2(f"buffer_store_dwordx4 {vr(PV,4)}, v{vD}, {sr(rWS,4)}, s{sOown} offen", "o"))
    stamp("Opub")
    if wo_wait: P.wait(wol[wo_wait-1])
    C("this wave's 32 elements of o from the head's eight workgroups, then o . Wo tile")
    poll("1", f"buffer_load_dwordx4 {vr(G,4)}, v{vOg}, {sr(rWS,4)}, s{sOg} offen sc1")
    stamp("got1")
    scatter_reduce(G); I(f"v_add_f32_dpp v{G}, v{G}, v{G} row_ror:8 {DPPF}")
    I(f"v_cvt_pk_bf16_f32 v{HO}, v{G}, v{G}")
    AB = [AA[0], AA[1], RAW, RAW + 4, G + 4, G + 8, G + 12, QK[0]]
    for t in range(8):
        build_a(AB[t], HO, t)
        if t > 0: mfma(vr(Y,4), vr(AB[t-1],4), woslot(t-1), vr(Y,4))
    mfma(vr(Y,4), vr(AB[7],4), woslot(7), vr(Y,4))
    wg_reduce(Y, L_Y, "yred", lambda: P.vm(f"buffer_store_dwordx4 {vr(Y,4)}, v{vDy}, {sr(rWS,4)}, s{sYown} offen {FAR}", False))
    stamp("Ypub")
    C("wave 1 of the workgroups with r < 9: eight output columns, summed over the 32 heads")
    I(f"s_cmp_lg_u32 s{sW}, 1"); I("s_cbranch_scc1 L_fin"); I(f"s_cmp_ge_u32 s{sR}, 9"); I("s_cbranch_scc1 L_fin")
    P.region = "cons"
    poll("2", f"buffer_load_dwordx4 {vr(G,4)}, v{vYg}, {sr(rWS,4)}, s{sYs} offen sc1")
    stamp("got2")
    scatter_reduce(G); rowred("v_add_f32", G, (8, 4, 2))
    I(f"v_add_f32 v{G}, v{G}, v{vXo}"); I(f"v_cvt_pk_bf16_f32 v{G}, v{G}, v{G}")
    P.vm(f"buffer_store_short v{G}, v{vOut}, {sr(rOUT,4)}, s{sC} offen ")
    P.region = None
    I("L_fin:")
    if stamps:
        stamp("fin")
        I(f"v_writelane_b32 v{vStamp}, s{sXcc}, 31")
        I(f"s_sub_u32 s{sT0}, s{sOown}, {WS_O}"); I(f"s_lshl_b32 s{sT1}, s{sW}, 7"); I(f"s_add_u32 s{sT0}, s{sT0}, s{sT1}"); I(f"s_add_u32 s{sT0}, s{sT0}, {WS_STAMP}")
        I(f"v_lshlrev_b32 v{vT1}, 2, v{vLane}"); lo32()
        P.vm(f"buffer_store_dword v{vStamp}, v{vT1}, {sr(rWS,4)}, s{sT0} offen")
    I("s_endpgm")

    C("---- slow paths ----")
    def spin(tag, off, done):
        I(f"s_mov_b32 s{sT2}, {SPIN}"); I(f"L_r1{tag}:")
        I(f"v_and_b32 v{vT1}, 3, v{vLane}"); I(f"v_lshlrev_b32 v{vT1}, 3, v{vT1}")
        I(f"buffer_load_dword v{vT2}, v{vT1}, {sr(rDBG,4)}, s{sFlagQ} offen offset:{off} sc1"); I("s_waitcnt vmcnt(0)")
        I(f"v_and_b32 v{vT1}, 0x3ff, v{vT2}"); I(f"v_cmp_gt_u32 vcc, 8, v{vT1}"); I("s_nop 7"); I(f"s_cbranch_vccz {done}")
        I(f"s_sub_u32 s{sT2}, s{sT2}, 1"); I(f"s_cmp_lg_u32 s{sT2}, 0"); I(f"s_cbranch_scc1 L_r1{tag}")
    C("wait for the four counters; if several dies signed them, publish again through memory and meet on a second set")
    I("L_r1:"); I("s_nop 7")
    spin("a", 0, "L_r1b"); I("L_r1b:")
    I(f"v_cmp_ne_u32 vcc, s{sSig}, v{vT2}"); I("s_nop 7"); I("s_cbranch_vccz L_c1")
    I(f"s_mov_b32 s{sLoc}, 0")
    I(clr_txt + " " + FAR); I(part_txt + " " + FAR); I("s_waitcnt vmcnt(0)"); I("s_barrier")
    I(f"s_cmp_lg_u32 s{sW}, 0"); I("s_cbranch_scc1 L_r1c")
    I(f"s_add_u32 s{sT2}, s{sFlag}, 4"); I(f"s_mov_b32 s{sOne}, 1"); I(f"s_atomic_add s{sOne}, {sr(sDbg)}, s{sT2}"); I("s_waitcnt lgkmcnt(0)")
    I("L_r1c:")
    spin("d", 4, "L_c1")
    I("s_branch L_c1")
    C("wait for the head's statistics and for every counter")
    I("L_r2:"); I("s_nop 7"); I(f"s_mov_b32 s{sT2}, {SPIN}"); I("L_r2_l:")
    for x in st_txt + ["s_waitcnt vmcnt(0)"] + st_chk + ["s_nop 7", "s_cbranch_vccz L_c2"]: I(x)
    I(f"s_sub_u32 s{sT2}, s{sT2}, 1"); I(f"s_cmp_lg_u32 s{sT2}, 0"); I("s_cbranch_scc1 L_r2_l"); I("s_branch L_c2")
    I("L_end:"); I("s_endpgm")

    head = open("cdna_kernels/" + NAME + ".s.ref").read().split("\n")
    head = [l for l in head if l.startswith(";") and "@launch" not in l and "Override launch" not in l and "grid=ceil" not in l]
    if stamps: head.append("; stamps: " + " ".join(snames))
    out = head + HEADER.rstrip("\n").split("\n") + [f"; @launch grid=(256,1,1) block=(256,1,1) lds={L_END}",
                  '.amdgcn_target "amdgcn-amd-amdhsa--gfx950"', ".text", f".globl {KN}", ".p2align 8", f".type {KN},@function", f"{KN}:"]
    tail = ['.section .rodata,"a"', ".p2align 6", f".amdhsa_kernel {KN}", "  .amdhsa_next_free_vgpr 512", "  .amdhsa_next_free_sgpr 102",
            "  .amdhsa_accum_offset 256", "  .amdhsa_group_segment_fixed_size 0", "  .amdhsa_kernarg_size 96", "  .amdhsa_user_sgpr_count 2",
            "  .amdhsa_user_sgpr_kernarg_segment_ptr 1", "  .amdhsa_system_sgpr_workgroup_id_x 1", "  .amdhsa_float_denorm_mode_32 3", ".end_amdhsa_kernel"]
    return "\n".join(out) + "\n" + P.text() + "\n".join(tail) + "\n"

if __name__ == "__main__":
    for spec in sys.argv[1:]:
        name, _, kv = spec.partition(":")
        d = {k: int(v) for k, v in (p.split("=") for p in kv.split(",") if p)}
        open(name, "w").write(gen(**d))
```
